```python
import torch

def _softmax(x, axis=-1):
    return torch.softmax(x, dim=axis)
def _gelu(x):
    return torch.nn.functional.gelu(x, approximate="tanh")
def _silu(x):
    return torch.nn.functional.silu(x)
def _sigmoid(x):
    return torch.sigmoid(x)
def _layernorm(x, axis=-1, eps=1e-5):
    m = x.mean(dim=axis, keepdim=True)
    v = x.var(dim=axis, keepdim=True, unbiased=False)
    return (x - m) / torch.sqrt(v + eps)
def _scatter_add(tgt, idx, src, axis=0):
    return tgt.clone().index_add_(axis, idx, src)
def _segment_sum(src, seg, n):
    out = torch.zeros((n,) + src.shape[1:], dtype=src.dtype)
    return out.index_add_(0, seg, src)
def _pad(x, pw):
    flat = tuple(v for pair in reversed(pw) for v in pair)
    return torch.nn.functional.pad(x, flat)

kernel_name = 'concat_heads__gqa_block_cached__mha_block_cached__decode'

def setup_inputs():

    _w = (lambda a: (lambda t: t.to(torch.bfloat16) if t.is_floating_point() else t)(torch.as_tensor(a)))
    def _A_setup():
        B, Sq, D = 2, 1, 576
        Hq, Hkv, Sk, Dh = 32, 16, 8192, 128
        assert Hq % Hkv == 0, (Hq, Hkv)
        return {
            "x": _w((lambda *s: torch.randn(*s, dtype=torch.bfloat16) * 0.8)(B, Sq, D)),
            "k_cache": _w((lambda *s: torch.randn(*s, dtype=torch.bfloat16) * 0.8)(B, Hkv, Sk, Dh)),
            "v_cache": _w((lambda *s: torch.randn(*s, dtype=torch.bfloat16) * 0.05)(B, Hkv, Sk, Dh)),
            "wq": _w((lambda *s: torch.randn(*s, dtype=torch.bfloat16) * 0.8)(D, Hq * Dh) * (D ** -0.5)),
            "wo": _w((lambda *s: torch.randn(*s, dtype=torch.bfloat16) * 0.05)(Hq * Dh, D) * ((Hq * Dh) ** -0.5)),
        }
    _A_in = _A_setup()

    def _B_setup():
        B, Sq, D = 2, 1, 576
        H, Sk, Dh = 32, 8192, 128
        return {
            "x": _w((lambda *s: torch.randn(*s, dtype=torch.bfloat16) * 0.8)(B, Sq, D)),
            "k_cache": _w((lambda *s: torch.randn(*s, dtype=torch.bfloat16) * 0.8)(B, H, Sk, Dh)),
            "v_cache": _w((lambda *s: torch.randn(*s, dtype=torch.bfloat16) * 0.05)(B, H, Sk, Dh)),
            "wq": _w((lambda *s: torch.randn(*s, dtype=torch.bfloat16) * 0.8)(D, H * Dh) * (D ** -0.5)),
            "wo": _w((lambda *s: torch.randn(*s, dtype=torch.bfloat16) * 0.05)(H * Dh, D) * ((H * Dh) ** -0.5)),
        }
    _B_in = _B_setup()

    return {
        "A_x": _A_in["x"],
        "A_k_cache": _A_in["k_cache"],
        "A_v_cache": _A_in["v_cache"],
        "A_wq": _A_in["wq"],
        "A_wo": _A_in["wo"],
        "B_x": _B_in["x"],
        "B_k_cache": _B_in["k_cache"],
        "B_v_cache": _B_in["v_cache"],
        "B_wq": _B_in["wq"],
        "B_wo": _B_in["wo"],
    }

def reference(A_x, A_k_cache, A_v_cache, A_wq, A_wo, B_x, B_k_cache, B_v_cache, B_wq, B_wo):
    def _A_ref(x, k_cache, v_cache, wq, wo):
        B, Sq, D = x.shape
        Hq, Dh = 32, 128
        Hkv = k_cache.shape[1]
        rep = Hq // Hkv
        q = (lambda x, *d: x.permute(*d))((x @ wq).reshape(B, Sq, Hq, Dh), 0, 2, 1, 3)
        k = (lambda x, n, axis: torch.repeat_interleave(x, n, dim=axis))(k_cache, rep, axis=1)
        v = (lambda x, n, axis: torch.repeat_interleave(x, n, dim=axis))(v_cache, rep, axis=1)
        scores = torch.einsum("bhqd,bhkd->bhqk", q, k) * (Dh ** -0.5)
        p = _softmax(scores, axis=-1)
        o = torch.einsum("bhqk,bhkd->bhqd", p, v)
        return (lambda x, *d: x.permute(*d))(o, 0, 2, 1, 3).reshape(B, Sq, Hq * Dh) @ wo

    def _B_ref(x, k_cache, v_cache, wq, wo):
        B, Sq, D = x.shape
        H, Dh = 32, 128
        q = (lambda x, *d: x.permute(*d))((x @ wq).reshape(B, Sq, H, Dh), 0, 2, 1, 3)
        scores = torch.einsum("bhqd,bhkd->bhqk", q, k_cache) * (Dh ** -0.5)
        p = _softmax(scores, axis=-1)
        o = torch.einsum("bhqk,bhkd->bhqd", p, v_cache)
        return (lambda x, *d: x.permute(*d))(o, 0, 2, 1, 3).reshape(B, Sq, H * Dh) @ wo

    a = _A_ref(A_x, A_k_cache, A_v_cache, A_wq, A_wo)
    b = _B_ref(B_x, B_k_cache, B_v_cache, B_wq, B_wo)
    return torch.concatenate([a, b], axis=-1)
```

```python
import re

TRANS = ("v_exp_f32", "v_log_f32", "v_rcp_f32", "v_rsq_f32", "v_sqrt_f32", "v_sin_f32", "v_cos_f32")

_reg_re = re.compile(r"\b([vs])(\d+)\b|\b([vs])\[(\d+):(\d+)\]|\b(vcc|exec)\b")


def regs_of(op):
    out = []
    for m in _reg_re.finditer(op):
        if m.group(1):
            out.append((m.group(1), int(m.group(2))))
        elif m.group(3):
            for i in range(int(m.group(4)), int(m.group(5)) + 1):
                out.append((m.group(3), i))
        else:
            out.append((m.group(6), 0))
    return out


def split_ops(rest):
    ops, depth, cur = [], 0, ""
    for ch in rest:
        if ch in "[(":
            depth += 1
        if ch in "])":
            depth -= 1
        if ch == "," and depth == 0:
            ops.append(cur.strip())
            cur = ""
        else:
            cur += ch
    if cur.strip():
        ops.append(cur.strip())
    return ops


class Asm:
    def __init__(self):
        self.lines = []
        self.pos = 0
        self.vw = {}
        self.sw = {}
        self.stw = {}
        self.maxv = -1
        self.maxs = -1

    def raw(self, text):
        self.lines.append(text)

    def comment(self, text):
        self.lines.append("    ; " + text)

    def label(self, name):
        self.lines.append(name + ":")

    def nop(self, n):
        while n > 0:
            k = min(n, 16)
            self.lines.append("    s_nop %d" % (k - 1))
            self.pos += k
            n -= k

    def reset_hazards(self):
        self.nop(5)

    def __call__(self, text):
        text = text.strip()
        if "\n" in text:
            for l in text.split("\n"):
                if l.strip():
                    self(l)
            return
        code = text.split(";")[0].strip()
        parts = code.split(None, 1)
        mn = parts[0]
        rest = parts[1] if len(parts) > 1 else ""
        ops = split_ops(rest)
        mods = ""
        if ops:
            last = ops[-1].split(None, 1)
            if len(last) > 1 and not ops[-1].startswith("hwreg"):
                ops[-1] = last[0]
                mods = last[1]
        for o in ops:
            for k, n in regs_of(o):
                if k == "v":
                    self.maxv = max(self.maxv, n)
                if k == "s":
                    self.maxs = max(self.maxs, n)
        need = 0

        def req(p, ws):
            nonlocal need
            need = max(need, p + 1 + ws)

        is_valu = mn.startswith("v_")
        is_vmem = mn.startswith("buffer_") or mn.startswith("global_") or mn.startswith("flat_")
        is_ds = mn.startswith("ds_")
        is_dpp = ("row_" in mods) or ("quad_perm" in mods) or mn.endswith("_dpp")
        is_perm = mn.startswith("v_permlane")
        is_rl = mn in ("v_readfirstlane_b32", "v_readlane_b32")
        is_dot = mn.startswith("v_dot")
        is_trans = mn.replace("_e32", "").replace("_e64", "") in TRANS
        dsts, srcs = [], []
        if is_valu:
            if mn.startswith("v_cmp"):
                dsts = regs_of(ops[0])
                srcs = [r for o in ops[1:] for r in regs_of(o)]
            elif is_perm:
                dsts = regs_of(ops[0]) + regs_of(ops[1])
                srcs = dsts[:]
            elif mn in ("v_add_co_u32", "v_addc_co_u32", "v_sub_co_u32"):
                dsts = regs_of(ops[0]) + regs_of(ops[1])
                srcs = [r for o in ops[2:] for r in regs_of(o)]
            else:
                dsts = regs_of(ops[0])
                srcs = [r for o in ops[1:] for r in regs_of(o)]
                if mn.startswith("v_fmac") or mn.startswith("v_dot2c") or mn.startswith("v_writelane"):
                    srcs += dsts
            if mn.startswith("v_cndmask") and len(ops) == 3:
                srcs.append(("vcc", 0))
        elif is_vmem:
            allr = [r for o in ops for r in regs_of(o)]
            if "load" in mn and "lds" not in mods and "lds" not in mn:
                dsts = regs_of(ops[0])
                srcs = [r for o in ops[1:] for r in regs_of(o)]
            elif "atomic" in mn and "sc0" in mods:
                dsts = regs_of(ops[0]) if mn.startswith("buffer") else regs_of(ops[0])
                srcs = allr
            else:
                srcs = allr
        elif is_ds:
            if "read" in mn or "bpermute" in mn or "swizzle" in mn or "rtn" in mn or "permute" in mn:
                dsts = regs_of(ops[0])
                srcs = [r for o in ops[1:] for r in regs_of(o)]
            else:
                srcs = [r for o in ops for r in regs_of(o)]
        else:
            srcs = [r for o in ops for r in regs_of(o)]

        for idx, r in enumerate(srcs + dsts):
            if r[0] != "v" or r[1] not in self.vw:
                continue
            p, kind, opc = self.vw[r[1]]
            isrc = r in srcs
            if is_valu and isrc and (is_dpp or is_perm):
                req(p, 2)
            if is_rl and isrc:
                req(p, 1)
            if kind == "trans" and isrc and not is_trans:
                req(p, 1)
            if kind == "trans" and isrc and is_trans:
                req(p, 1)
            if kind == "dot":
                ok = False
                if is_dot and mn == opc:
                    ab = [x for o in ops[1:3] for x in regs_of(o)]
                    if r not in ab:
                        ok = True
                if not ok:
                    req(p, 3)
        if is_valu or is_vmem or is_ds:
            for r in dsts:
                if r[0] == "v" and r[1] in self.stw:
                    req(self.stw[r[1]], 2)
        for r in srcs:
            if r[0] in ("s", "vcc", "exec") and r in self.sw:
                p = self.sw[r]
                if is_vmem:
                    req(p, 5)
                elif is_valu:
                    req(p, 4 if mn in ("v_readlane_b32", "v_writelane_b32") else 2)
                else:
                    req(p, 1)
        if mn.startswith("s_cbranch_vcc") and ("vcc", 0) in self.sw:
            req(self.sw[("vcc", 0)], 1)
        if need > self.pos:
            self.nop(need - self.pos)
        self.lines.append("    " + text)
        if mn == "s_nop":
            self.pos += int(ops[0], 0) + 1
            return
        here = self.pos
        self.pos += 1
        if is_valu:
            kind = "trans" if is_trans else ("dot" if is_dot else "n")
            for r in dsts:
                if r[0] == "v":
                    self.vw[r[1]] = (here, kind, mn)
                else:
                    self.sw[r] = here
        else:
            for r in dsts:
                if r[0] == "v":
                    self.vw.pop(r[1], None)
            if not is_vmem and not is_ds and ops:
                for r in regs_of(ops[0]):
                    self.sw.pop(r, None)
        if is_vmem and "store" in mn and ("x4" in mn or "x3" in mn):
            dop = ops[0] if mn.startswith("buffer") else ops[1]
            for r in regs_of(dop):
                if r[0] == "v":
                    self.stw[r[1]] = here

    def text(self):
        return "\n".join(self.lines) + "\n"


def kernel_wrap(name, asm, extra_sgpr=0, vgpr=None):
    nv = (asm.maxv + 1) if vgpr is None else vgpr
    nv = max(nv, 8)
    acc = (nv + 3) // 4 * 4
    ns = min(102, max(asm.maxs + 1 + extra_sgpr, 16))
    body = ".globl %s\n.p2align 8\n.type %s,@function\n%s:\n" % (name, name, name) + asm.text()
    desc = """.amdhsa_kernel %s
  .amdhsa_next_free_vgpr %d
  .amdhsa_next_free_sgpr %d
  .amdhsa_accum_offset %d
  .amdhsa_group_segment_fixed_size 0
  .amdhsa_kernarg_size 104
  .amdhsa_user_sgpr_count 2
  .amdhsa_user_sgpr_kernarg_segment_ptr 1
  .amdhsa_system_sgpr_workgroup_id_x 1
.end_amdhsa_kernel
""" % (name, nv, ns, acc)
    return body, desc
```

```python
import struct
import sys
import os

sys.path.insert(0, os.path.dirname(os.path.abspath(__file__)))
from asmlib import Asm, kernel_wrap

NAME = "concat_heads__gqa_block_cached__mha_block_cached__decode"
HEADER = open(os.path.join(os.path.dirname(os.path.abspath(__file__)), "header.txt")).read()

C_SCALE = 1.4426950408889634 * (128 ** -0.5)


def f32(x):
    return "0x%08x" % struct.unpack("<I", struct.pack("<f", x))[0]


WS_Q = 0
WS_PART = 0x10000
WS_BYTES = 0x10000 + 96 * 8 * 1024
W_BYTES = 576 * 4096 * 2
DPP = "row_mask:0xf bank_mask:0xf"


def srd(a, d, lo, hi, nbytes):
    a("s_mov_b32 s%d, s%d" % (d, lo))
    a("s_and_b32 s%d, s%d, 0xffff" % (d + 1, hi))
    a("s_mov_b32 s%d, %s" % (d + 2, nbytes if isinstance(nbytes, str) else hex(nbytes)))
    a("s_mov_b32 s%d, 0x20000" % (d + 3))


def reduce16_rows(a, y):
    for k in range(8):
        a("v_permlane32_swap_b32 v%d, v%d" % (y[k], y[k + 8]))
    for k in range(8):
        a("v_add_f32 v%d, v%d, v%d" % (y[k], y[k], y[k + 8]))
    for k in range(4):
        a("v_permlane16_swap_b32 v%d, v%d" % (y[k], y[k + 4]))
    for k in range(4):
        a("v_add_f32 v%d, v%d, v%d" % (y[k], y[k], y[k + 4]))


def gen_qproj():
    a = Asm()
    a("s_cmp_ge_u32 s2, 256")
    a("s_cbranch_scc1 Lq_end")
    a("s_load_dwordx2 s[4:5], s[0:1], 0")
    a("s_load_dwordx2 s[6:7], s[0:1], 24")
    a("s_load_dwordx2 s[8:9], s[0:1], 40")
    a("s_load_dwordx2 s[10:11], s[0:1], 64")
    a("s_load_dwordx2 s[12:13], s[0:1], 96")
    a("v_lshrrev_b32 v1, 6, v0")
    a("v_and_b32 v2, 63, v0")
    a("v_mul_u32_u24 v3, 144, v1")
    a("v_lshrrev_b32 v4, 2, v2")
    a("v_add_u32 v3, v3, v4")
    a("v_lshlrev_b32 v5, 1, v3")
    a("v_lshlrev_b32 v3, 13, v3")
    a("v_and_b32 v4, 3, v2")
    a("v_lshl_add_u32 v3, v4, 4, v3")
    a("s_and_b32 s3, s2, 127")
    a("s_lshl_b32 s3, s3, 6")
    a("v_add_u32 v3, s3, v3")
    a("s_waitcnt lgkmcnt(0)")
    a("s_cmp_ge_u32 s2, 128")
    a("s_cselect_b32 s4, s8, s4")
    a("s_cselect_b32 s5, s9, s5")
    a("s_cselect_b32 s6, s10, s6")
    a("s_cselect_b32 s7, s11, s7")
    srd(a, 16, 4, 5, 2304)
    srd(a, 20, 6, 7, W_BYTES)
    srd(a, 24, 12, 13, WS_BYTES)
    W0 = 8
    X0 = 44
    ACC = 62
    T = 78
    for i in range(9):
        a("s_mov_b32 s28, %d" % (i * 131072))
        a("buffer_load_dwordx4 v[%d:%d], v3, s[20:23], s28 offen nt" % (W0 + 4 * i, W0 + 4 * i + 3))
    for i in range(9):
        for b in range(2):
            a("buffer_load_ushort v%d, v5, s[16:19], 0 offen offset:%d" % (X0 + 2 * i + b, i * 32 + b * 1152))
    for k in range(16):
        a("v_mov_b32 v%d, 0" % (ACC + k))
    a("s_waitcnt vmcnt(0)")
    for k in range(18):
        a("v_lshlrev_b32 v%d, 16, v%d" % (X0 + k, X0 + k))
    for i in range(9):
        for j in range(4):
            a("v_lshlrev_b32 v%d, 16, v%d" % (T + 2 * j, W0 + 4 * i + j))
            a("v_and_b32 v%d, 0xffff0000, v%d" % (T + 2 * j + 1, W0 + 4 * i + j))
        for b in range(2):
            xr = X0 + 2 * i
            sel = "op_sel:[0,0,0] op_sel_hi:[1,0,1]" if b == 0 else "op_sel:[0,1,0] op_sel_hi:[1,1,1]"
            for j in range(4):
                r = ACC + 8 * b + 2 * j
                a("v_pk_fma_f32 v[%d:%d], v[%d:%d], v[%d:%d], v[%d:%d] %s" % (r, r + 1, T + 2 * j, T + 2 * j + 1, xr, xr + 1, r, r + 1, sel))
    y = [ACC + k for k in range(16)]
    reduce16_rows(a, y)
    for sh in (8, 4):
        for k in range(4):
            a("v_add_f32_dpp v%d, v%d, v%d row_ror:%d %s" % (y[k], y[k], y[k], sh, DPP))
    a("v_lshrrev_b32 v4, 4, v2")
    a("v_lshrrev_b32 v5, 1, v4")
    a("v_and_b32 v4, 1, v4")
    a("v_lshlrev_b32 v6, 8, v1")
    a("v_lshl_add_u32 v6, v5, 7, v6")
    a("v_lshl_add_u32 v6, v4, 4, v6")
    a("v_and_b32 v4, 3, v2")
    a("v_lshl_add_u32 v6, v4, 5, v6")
    a("v_and_b32 v4, 15, v2")
    a("v_mov_b32 v%d, v%d" % (T, y[0]))
    a("v_mov_b32 v%d, v%d" % (T + 1, y[1]))
    a("v_mov_b32 v%d, v%d" % (T + 2, y[2]))
    a("v_mov_b32 v%d, v%d" % (T + 3, y[3]))
    a("v_cmp_gt_u32 vcc, 4, v4")
    a("s_and_saveexec_b64 s[30:31], vcc")
    a("ds_write_b64 v6, v[%d:%d]" % (T, T + 1))
    a("ds_write_b64 v6, v[%d:%d] offset:8" % (T + 2, T + 3))
    a("s_mov_b64 exec, s[30:31]")
    a("s_waitcnt lgkmcnt(0)")
    a("s_barrier")
    a("v_cmp_gt_u32 vcc, 64, v0")
    a("s_and_saveexec_b64 s[30:31], vcc")
    a("s_cbranch_execz Lq_end")
    a("v_lshlrev_b32 v6, 2, v0")
    for w in range(4):
        a("ds_read_b32 v%d, v6 offset:%d" % (8 + w, w * 256))
    a("s_lshr_b32 s28, s2, 7")
    a("s_lshl_b32 s28, s28, 14")
    a("s_add_u32 s28, s28, s3")
    a("v_lshrrev_b32 v4, 5, v0")
    a("v_and_b32 v5, 31, v0")
    a("v_lshlrev_b32 v4, 13, v4")
    a("v_lshl_add_u32 v4, v5, 1, v4")
    a("s_waitcnt lgkmcnt(0)")
    a("v_add_f32 v8, v8, v9")
    a("v_add_f32 v10, v10, v11")
    a("v_add_f32 v8, v8, v10")
    a("v_cvt_pk_bf16_f32 v8, v8, v8")
    a("buffer_store_short v8, v4, s[24:27], s28 offen offset:%d" % WS_Q)
    a.label("Lq_end")
    a("s_endpgm")
    return a


def gen_attn(T=4, NB=2, mode=1):
    NT = 64 // T
    assert NT % NB == 0
    a = Asm()
    a("s_cmp_ge_u32 s2, 256")
    a("s_cbranch_scc1 La_end")
    a("s_load_dwordx4 s[4:7], s[0:1], 8")
    a("s_load_dwordx4 s[8:11], s[0:1], 48")
    a("s_load_dwordx2 s[12:13], s[0:1], 96")
    a("v_lshrrev_b32 v2, 6, v0")
    a("v_and_b32 v3, 63, v0")
    a("v_readfirstlane_b32 s28, v2")
    a("v_lshlrev_b32 v1, 4, v3")
    a("v_and_b32 v2, 15, v3")
    a("v_lshlrev_b32 v2, 4, v2")
    a("s_mul_i32 s29, s2, 3")
    a("s_lshr_b32 s35, s28, 2")
    a("s_add_u32 s29, s29, s35")
    a("s_lshr_b32 s30, s29, 3")
    a("s_and_b32 s35, s28, 3")
    a("s_mov_b32 s31, %s" % f32(C_SCALE))
    a("s_sub_u32 s36, s29, 256")
    a("s_cmp_lt_u32 s29, 256")
    a("s_cselect_b32 s36, s29, s36")
    a("s_lshl_b32 s36, s36, 18")
    if mode == 0:
        a("s_lshl_b32 s37, s35, 16")
        a("s_mov_b32 s38, 0x10000")
        stride = T * 1024
    else:
        a("s_mul_i32 s37, s35, %d" % (T * 1024))
        a("s_sub_u32 s38, 0x40000, s37")
        stride = 4 * T * 1024
    a("s_add_u32 s36, s36, s37")
    a("s_waitcnt lgkmcnt(0)")
    a("s_cmp_lt_u32 s29, 256")
    a("s_cselect_b32 s4, s4, s8")
    a("s_cselect_b32 s5, s5, s9")
    a("s_cselect_b32 s6, s6, s10")
    a("s_cselect_b32 s7, s7, s11")
    a("s_add_u32 s4, s4, s36")
    a("s_addc_u32 s5, s5, 0")
    a("s_add_u32 s6, s6, s36")
    a("s_addc_u32 s7, s7, 0")
    srd(a, 16, 4, 5, "s38")
    srd(a, 20, 6, 7, "s38")
    srd(a, 24, 12, 13, WS_BYTES)
    a("s_lshl_b32 s39, s30, 9")
    a("s_lshl_b32 s40, s30, 8")
    a("s_add_u32 s40, s40, %d" % (16384 - 32 * 256))
    a("s_cmp_lt_u32 s29, 256")
    a("s_cselect_b32 s39, s39, s40")

    Q = 4
    ACC = 12
    M = 28
    L = 30
    NM = 32
    AL = 34
    S = 36
    TMP = S + 2 * T
    TMP += TMP % 2
    KR = TMP + 8
    KR += (-KR) % 4
    VR = KR + NB * T * 4
    END = VR + NB * T * 4

    a("buffer_load_dwordx4 v[%d:%d], v2, s[24:27], s39 offen offset:%d" % (Q, Q + 3, WS_Q))
    a("buffer_load_dwordx4 v[%d:%d], v2, s[24:27], s39 offen offset:%d" % (Q + 4, Q + 7, WS_Q + 256))

    def loads(base, srd_, soff):
        for i in range(T):
            r = base + 4 * i
            assert i * 1024 < 4096 or True
            if i < 4:
                a("buffer_load_dwordx4 v[%d:%d], v1, s[%d:%d], %s offen offset:%d nt" % (r, r + 3, srd_, srd_ + 3, soff, i * 1024))
            else:
                a("buffer_load_dwordx4 v[%d:%d], v%d, s[%d:%d], %s offen offset:%d nt" % (r, r + 3, 3, srd_, srd_ + 3, soff, (i - 4) * 1024))

    if T > 4:
        assert T <= 8
        a("v_add_u32 v3, 0x1000, v1")
    a("s_mov_b32 s32, 0")
    for t in range(NB):
        loads(KR + t * T * 4, 16, "s32")
        loads(VR + t * T * 4, 20, "s32")
        a("s_add_u32 s32, s32, %d" % stride)
    for k in range(16):
        a("v_mov_b32 v%d, 0" % (ACC + k))
    for h in range(2):
        a("v_mov_b32 v%d, 0xff800000" % (M + h))
        a("v_mov_b32 v%d, 0" % (L + h))
    a("s_mov_b32 s34, %d" % (NT // NB))
    a("s_cmp_lt_u32 s29, 256")
    a("s_cbranch_scc1 La_loopA")

    def body(NH, tag):
        a.label("La_loop" + tag)
        for t in range(NB):
            kb = KR + t * T * 4
            vb = VR + t * T * 4
            a("s_waitcnt vmcnt(%d)" % ((2 * NB - 1) * T))
            for j in range(4):
                for i in range(T):
                    for h in range(NH):
                        s = S + h * T + i
                        a("v_dot2_f32_bf16 v%d, v%d, v%d, %s" % (s, kb + 4 * i + j, Q + 4 * h + j, "0" if j == 0 else "v%d" % s))
            loads(kb, 16, "s32")
            for sh in (8, 4, 2, 1):
                for h in range(NH):
                    for i in range(T):
                        s = S + h * T + i
                        a("v_add_f32_dpp v%d, v%d, v%d row_ror:%d %s" % (s, s, s, sh, DPP))
            for h in range(NH):
                a("v_max3_f32 v%d, v%d, v%d, v%d" % (TMP + h, M + h, S + h * T, S + h * T + 1))
                for i in range(2, T, 2):
                    a("v_max3_f32 v%d, v%d, v%d, v%d" % (TMP + h, TMP + h, S + h * T + i, S + h * T + i + 1))
            for h in range(NH):
                a("v_mul_f32 v%d, s31, v%d" % (NM + h, TMP + h))
            for h in range(NH):
                a("v_fma_f32 v%d, v%d, s31, -v%d" % (AL + h, M + h, NM + h))
                for i in range(T):
                    s = S + h * T + i
                    a("v_fma_f32 v%d, v%d, s31, -v%d" % (s, s, NM + h))
            for h in range(NH):
                a("v_exp_f32 v%d, v%d" % (AL + h, AL + h))
                for i in range(T):
                    s = S + h * T + i
                    a("v_exp_f32 v%d, v%d" % (s, s))
            for h in range(NH):
                a("v_mov_b32 v%d, v%d" % (M + h, TMP + h))
            for h in range(NH):
                sel = "op_sel:[0,0] op_sel_hi:[1,0]" if h == 0 else "op_sel:[0,1] op_sel_hi:[1,1]"
                for j in range(4):
                    r = ACC + 8 * h + 2 * j
                    a("v_pk_mul_f32 v[%d:%d], v[%d:%d], v[%d:%d] %s" % (r, r + 1, r, r + 1, AL, AL + 1, sel))
                a("v_fma_f32 v%d, v%d, v%d, v%d" % (L + h, L + h, AL + h, S + h * T))
            for i in range(1, T):
                for h in range(NH):
                    a("v_add_f32 v%d, v%d, v%d" % (L + h, L + h, S + h * T + i))
            a("s_waitcnt vmcnt(%d)" % ((2 * NB - 1) * T))
            for i in range(T):
                for j in range(4):
                    a("v_lshlrev_b32 v%d, 16, v%d" % (TMP + 2 * j, vb + 4 * i + j))
                    a("v_and_b32 v%d, 0xffff0000, v%d" % (TMP + 2 * j + 1, vb + 4 * i + j))
                for h in range(NH):
                    p = S + h * T + i
                    pe = p - (p % 2)
                    sel = "op_sel:[0,0,0] op_sel_hi:[1,0,1]" if p % 2 == 0 else "op_sel:[0,1,0] op_sel_hi:[1,1,1]"
                    for j in range(4):
                        r = ACC + 8 * h + 2 * j
                        a("v_pk_fma_f32 v[%d:%d], v[%d:%d], v[%d:%d], v[%d:%d] %s" % (r, r + 1, TMP + 2 * j, TMP + 2 * j + 1, pe, pe + 1, r, r + 1, sel))
            loads(vb, 20, "s32")
            a("s_add_u32 s32, s32, %d" % stride)
        a("s_sub_u32 s34, s34, 1")
        a("s_cmp_lg_u32 s34, 0")
        a("s_cbranch_scc1 La_loop" + tag)

    body(1, "B")
    a("s_branch La_merge")
    body(2, "A")
    a.label("La_merge")
    a.nop(3)
    a("v_and_b32 v3, 63, v0")
    a("v_and_b32 v2, 15, v3")
    a("v_lshrrev_b32 v3, 4, v3")
    a("v_lshlrev_b32 v2, 5, v2")
    a("v_lshl_add_u32 v2, v3, 3, v2")
    a("s_mul_i32 s35, s28, 1056")
    a("v_add_u32 v2, s35, v2")
    a("v_mov_b32 v3, s35")
    a("s_cmp_lt_u32 s29, 256")
    a("s_cselect_b32 s36, 2, 1")
    for h in range(2):
        if h == 1:
            a("s_cmp_lt_u32 s29, 256")
            a("s_cbranch_scc0 La_merged")
        t1, t2 = TMP, TMP + 1
        a("v_mov_b32 v%d, v%d" % (t1, M + h))
        a("v_mov_b32 v%d, v%d" % (t2, M + h))
        a("v_permlane32_swap_b32 v%d, v%d" % (t1, t2))
        a("v_max_f32 v%d, v%d, v%d" % (t1, t1, t2))
        a("v_mov_b32 v%d, v%d" % (t2, t1))
        a("v_permlane16_swap_b32 v%d, v%d" % (t1, t2))
        a("v_max_f32 v%d, v%d, v%d" % (t1, t1, t2))
        a("v_mul_f32 v%d, s31, v%d" % (t1, t1))
        a("v_fma_f32 v%d, v%d, s31, -v%d" % (AL, M + h, t1))
        a("v_exp_f32 v%d, v%d" % (AL, AL))
        for j in range(4):
            r = ACC + 8 * h + 2 * j
            a("v_pk_mul_f32 v[%d:%d], v[%d:%d], v[%d:%d] op_sel:[0,0] op_sel_hi:[1,0]" % (r, r + 1, r, r + 1, AL, AL + 1))
        a("v_mul_f32 v%d, v%d, v%d" % (t2, L + h, AL))
        a("v_mov_b32 v%d, v%d" % (TMP + 2, t2))
        a("v_permlane32_swap_b32 v%d, v%d" % (t2, TMP + 2))
        a("v_add_f32 v%d, v%d, v%d" % (t2, t2, TMP + 2))
        a("v_mov_b32 v%d, v%d" % (TMP + 2, t2))
        a("v_permlane16_swap_b32 v%d, v%d" % (t2, TMP + 2))
        a("v_add_f32 v%d, v%d, v%d" % (t2, t2, TMP + 2))
        o = [ACC + 8 * h + k for k in range(8)]
        for k in range(4):
            a("v_permlane32_swap_b32 v%d, v%d" % (o[k], o[k + 4]))
        for k in range(4):
            a("v_add_f32 v%d, v%d, v%d" % (o[k], o[k], o[k + 4]))
        for k in range(2):
            a("v_permlane16_swap_b32 v%d, v%d" % (o[k], o[k + 2]))
        for k in range(2):
            a("v_add_f32 v%d, v%d, v%d" % (o[k], o[k], o[k + 2]))
        a("ds_write_b64 v2, v[%d:%d] offset:%d" % (o[0], o[1], h * 528))
        a("ds_write_b64 v3, v[%d:%d] offset:%d" % (t1, t2, h * 528 + 512))
    a.label("La_merged")
    a("s_waitcnt lgkmcnt(0)")
    a("s_barrier")
    a("s_cmp_ge_u32 s28, 4")
    a("s_cbranch_scc1 La_end")
    a("s_mul_i32 s29, s2, 3")
    a("s_and_b32 s35, s29, 7")
    a("s_sub_u32 s35, 8, s35")
    a("s_min_u32 s35, s35, 3")
    a("s_lshr_b32 s36, s28, 1")
    a("s_and_b32 s37, s28, 1")
    a("s_cmp_eq_u32 s36, 0")
    a("s_cselect_b32 s38, 0, s35")
    a("s_cselect_b32 s39, s35, 3")
    a("s_cmp_ge_u32 s38, s39")
    a("s_cbranch_scc1 La_end")
    a("s_add_u32 s40, s29, s38")
    a("s_lshr_b32 s30, s40, 3")
    a("s_cmp_ge_u32 s30, 32")
    a("s_cselect_b32 s41, s37, 0")
    a("s_cmp_lg_u32 s41, 0")
    a("s_cbranch_scc1 La_end")
    a("s_mul_i32 s41, s30, %d" % (8 * 43691))
    a("s_lshr_b32 s41, s41, 17")
    a("s_sub_u32 s41, s2, s41")
    a("s_lshl_b32 s42, s30, 2")
    a("s_add_u32 s42, s42, s41")
    a("s_lshl_b32 s42, s42, 1")
    a("s_add_u32 s42, s42, s37")
    a("s_lshl_b32 s42, s42, 10")
    a("s_add_u32 s42, s42, %d" % WS_PART)
    a("v_and_b32 v3, 63, v0")
    a("s_mul_i32 s43, s37, 528")
    a("s_lshl_b32 s44, s38, 2")
    a("s_lshl_b32 s45, s39, 2")
    a("v_max_u32 v4, s44, v3")
    a("s_sub_u32 s46, s45, 1")
    a("v_min_u32 v4, s46, v4")
    a("v_mul_u32_u24 v5, 1056, v4")
    a("v_add_u32 v5, s43, v5")
    a("ds_read_b64 v[6:7], v5 offset:512")
    a("v_lshlrev_b32 v8, 3, v3")
    a("v_add_u32 v8, s43, v8")
    EO = 40
    for u in range(3):
        a("s_cmp_le_u32 s38, %d" % u)
        a("s_cbranch_scc0 La_skr%d" % u)
        a("s_cmp_gt_u32 s39, %d" % u)
        a("s_cbranch_scc0 La_skr%d" % u)
        for e in range(4 * u, 4 * u + 4):
            a("ds_read_b64 v[%d:%d], v8 offset:%d" % (EO + 2 * e, EO + 2 * e + 1, e * 1056))
        a.label("La_skr%d" % u)
    a("v_cmp_eq_u32 vcc, v4, v3")
    a("s_waitcnt lgkmcnt(0)")
    a("v_mov_b32 v9, 0xff800000")
    a("v_cndmask_b32 v6, v9, v6, vcc")
    a("v_mov_b32 v10, v6")
    for sh in (8, 4, 2, 1):
        a("v_max_f32_dpp v10, v10, v10 row_ror:%d %s" % (sh, DPP))
    a("v_sub_f32 v6, v6, v10")
    a("v_exp_f32 v6, v6")
    a("v_mul_f32 v11, v6, v7")
    for sh in (8, 4, 2, 1):
        a("v_add_f32_dpp v11, v11, v11 row_ror:%d %s" % (sh, DPP))
    a("v_mov_b32 v12, 0")
    a("v_mov_b32 v13, 0")
    for u in range(3):
        a("s_cmp_le_u32 s38, %d" % u)
        a("s_cbranch_scc0 La_skf%d" % u)
        a("s_cmp_gt_u32 s39, %d" % u)
        a("s_cbranch_scc0 La_skf%d" % u)
        for e in range(4 * u, 4 * u + 4):
            a("v_readlane_b32 s%d, v6, %d" % (48 + e % 4, e))
        for e in range(4 * u, 4 * u + 4):
            a("v_fma_f32 v12, v%d, s%d, v12" % (EO + 2 * e, 48 + e % 4))
            a("v_fma_f32 v13, v%d, s%d, v13" % (EO + 2 * e + 1, 48 + e % 4))
        a.label("La_skf%d" % u)
        a.nop(2)
    a("v_lshlrev_b32 v8, 3, v3")
    a("buffer_store_dwordx2 v[12:13], v8, s[24:27], s42 offen")
    a("v_cmp_eq_u32 vcc, 0, v3")
    a("s_and_saveexec_b64 s[46:47], vcc")
    a("buffer_store_dwordx2 v[10:11], v8, s[24:27], s42 offen offset:512")
    a.label("La_end")
    a("s_endpgm")
    return a


def gen_out():
    a = Asm()
    a("s_cmp_ge_u32 s2, 144")
    a("s_cbranch_scc1 Lo_end")
    a("s_load_dwordx2 s[4:5], s[0:1], 32")
    a("s_load_dwordx2 s[6:7], s[0:1], 72")
    a("s_load_dwordx2 s[8:9], s[0:1], 80")
    a("s_load_dwordx2 s[12:13], s[0:1], 96")
    a("v_lshrrev_b32 v2, 6, v0")
    a("v_and_b32 v3, 63, v0")
    a("v_readfirstlane_b32 s28, v2")
    a("s_cmp_ge_u32 s2, 72")
    a("s_cselect_b32 s29, 1, 0")
    a("s_mul_i32 s30, s29, 72")
    a("s_sub_u32 s30, s2, s30")
    a("v_lshl_add_u32 v4, v2, 8, v3")
    a("v_mul_u32_u24 v4, 1152, v4")
    a("s_lshl_b32 s31, s30, 4")
    a("v_add_u32 v4, s31, v4")
    a("v_lshlrev_b32 v5, 2, v3")
    a("v_mov_b32 v6, 0")
    a("s_waitcnt lgkmcnt(0)")
    a("s_cmp_ge_u32 s2, 72")
    a("s_cselect_b32 s4, s6, s4")
    a("s_cselect_b32 s5, s7, s5")
    srd(a, 16, 4, 5, W_BYTES)
    srd(a, 20, 8, 9, 4608)
    srd(a, 24, 12, 13, WS_BYTES)
    WO = 8
    PO = 24
    PM = 56
    Y = 88
    T = 104
    O = 112
    for i in range(4):
        a("s_mov_b32 s32, %d" % (i * 64 * 1152))
        a("buffer_load_dwordx4 v[%d:%d], v4, s[16:19], s32 offen nt" % (WO + 4 * i, WO + 4 * i + 3))
    for b in range(2):
        for hl in range(2):
            idx = b * 2 + hl
            a("s_add_u32 s33, s28, %d" % (16 * b))
            a("s_lshl_b32 s34, s28, 1")
            a("s_add_u32 s34, s34, %d" % (32 + 32 * b + hl))
            a("s_cmp_eq_u32 s29, 0")
            a("s_cselect_b32 s33, s33, s34")
            a("s_cselect_b32 s34, %d, 0" % (hl * 1024))
            a("s_lshl_b32 s35, s33, 13")
            a("s_add_u32 s35, s35, s34")
            a("s_add_u32 s35, s35, %d" % WS_PART)
            a("s_mul_i32 s36, s33, 43691")
            a("s_lshr_b32 s36, s36, 17")
            a("s_mul_i32 s36, s36, 3")
            a("s_sub_u32 s36, s33, s36")
            a("s_cmp_eq_u32 s36, 1")
            a("s_cselect_b32 s%d, 0, 0xff800000" % (40 + idx))
            a("s_cselect_b32 s37, 3, 2")
            a("s_lshl_b32 s37, s37, 11")
            for s in range(4):
                if s < 3:
                    a("s_add_u32 s38, s35, %d" % (s * 2048))
                else:
                    a("s_add_u32 s38, s35, s37")
                r = PO + (idx * 4 + s) * 2
                a("buffer_load_dword v%d, v5, s[24:27], s38 offen" % r)
                a("buffer_load_dword v%d, v5, s[24:27], s38 offen offset:256" % (r + 1))
                r = PM + (idx * 4 + s) * 2
                a("buffer_load_dwordx2 v[%d:%d], v6, s[24:27], s38 offen offset:512" % (r, r + 1))
    for k in range(16):
        a("v_mov_b32 v%d, 0" % (Y + k))
    a("s_waitcnt vmcnt(0)")
    for b in range(2):
        for hl in range(2):
            idx = b * 2 + hl
            m = [PM + (idx * 4 + s) * 2 for s in range(4)]
            a("v_add_f32 v%d, s%d, v%d" % (m[3], 40 + idx, m[3]))
            a("v_max3_f32 v%d, v%d, v%d, v%d" % (T, m[0], m[1], m[2]))
            a("v_max_f32 v%d, v%d, v%d" % (T, T, m[3]))
            for s in range(4):
                a("v_sub_f32 v%d, v%d, v%d" % (m[s], m[s], T))
            for s in range(4):
                a("v_exp_f32 v%d, v%d" % (m[s], m[s]))
            a("v_mul_f32 v%d, v%d, v%d" % (T, m[0], m[0] + 1))
            for s in range(1, 4):
                a("v_fma_f32 v%d, v%d, v%d, v%d" % (T, m[s], m[s] + 1, T))
            a("v_rcp_f32 v%d, v%d" % (T, T))
            for half in range(2):
                i = hl * 2 + half
                o = O + i * 2 + b
                po = [PO + (idx * 4 + s) * 2 + half for s in range(4)]
                a("v_mul_f32 v%d, v%d, v%d" % (o, m[0], po[0]))
                for s in range(1, 4):
                    a("v_fma_f32 v%d, v%d, v%d, v%d" % (o, m[s], po[s], o))
                a("v_mul_f32 v%d, v%d, v%d" % (o, o, T))
                a("v_cvt_pk_bf16_f32 v%d, v%d, v%d" % (o, o, o))
                a("v_and_b32 v%d, 0xffff0000, v%d" % (o, o))
    for i in range(4):
        for j in range(4):
            a("v_lshlrev_b32 v%d, 16, v%d" % (T + 2 * j, WO + 4 * i + j))
            a("v_and_b32 v%d, 0xffff0000, v%d" % (T + 2 * j + 1, WO + 4 * i + j))
        for b in range(2):
            xr = O + 2 * i
            sel = "op_sel:[0,0,0] op_sel_hi:[1,0,1]" if b == 0 else "op_sel:[0,1,0] op_sel_hi:[1,1,1]"
            for j in range(4):
                r = Y + 8 * b + 2 * j
                a("v_pk_fma_f32 v[%d:%d], v[%d:%d], v[%d:%d], v[%d:%d] %s" % (r, r + 1, T + 2 * j, T + 2 * j + 1, xr, xr + 1, r, r + 1, sel))
    y = [Y + k for k in range(16)]
    reduce16_rows(a, y)
    for sh in (8, 4, 2, 1):
        for k in range(4):
            a("v_add_f32_dpp v%d, v%d, v%d row_ror:%d %s" % (y[k], y[k], y[k], sh, DPP))
    a("v_lshrrev_b32 v4, 4, v3")
    a("v_lshlrev_b32 v4, 4, v4")
    a("v_lshl_add_u32 v4, v2, 6, v4")
    a("v_and_b32 v5, 15, v3")
    a("v_cmp_eq_u32 vcc, 0, v5")
    a("s_and_saveexec_b64 s[46:47], vcc")
    a("ds_write_b128 v4, v[%d:%d]" % (Y, Y + 3))
    a("s_mov_b64 exec, s[46:47]")
    a("s_waitcnt lgkmcnt(0)")
    a("s_barrier")
    a("v_cmp_gt_u32 vcc, 16, v0")
    a("s_and_saveexec_b64 s[46:47], vcc")
    a("s_cbranch_execz Lo_end")
    a("v_lshlrev_b32 v4, 2, v0")
    for w in range(16):
        a("ds_read_b32 v%d, v4 offset:%d" % (8 + w, w * 64))
    a("v_lshrrev_b32 v5, 3, v0")
    a("v_mul_u32_u24 v5, 2304, v5")
    a("v_and_b32 v6, 7, v0")
    a("v_lshl_add_u32 v5, v6, 1, v5")
    a("s_mul_i32 s32, s29, 1152")
    a("s_add_u32 s32, s32, s31")
    a("s_waitcnt lgkmcnt(0)")
    for st in (8, 4, 2, 1):
        for k in range(st):
            a("v_add_f32 v%d, v%d, v%d" % (8 + k, 8 + k, 8 + k + st))
    a("v_cvt_pk_bf16_f32 v8, v8, v8")
    a("buffer_store_short v8, v5, s[20:23], s32 offen")
    a.label("Lo_end")
    a("s_endpgm")
    return a


def build(path, T=4, NB=2, mode=1):
    ks = [("qproj_kernel", gen_qproj(), (256, 256, 1024)),
          ("attn_kernel", gen_attn(T, NB, mode), (256, 768, 12 * 1056)),
          ("outp_kernel", gen_out(), (144, 1024, 1024))]
    txt = HEADER
    for n, _, (g, b, lds) in ks:
        txt += "; @launch kernel=%s grid=(%d,1,1) block=(%d,1,1) lds=%d\n" % (n, g, b, lds)
    txt += '.amdgcn_target "amdgcn-amd-amdhsa--gfx950"\n.text\n'
    descs = ""
    for n, a, _ in ks:
        body, desc = kernel_wrap(n, a)
        txt += body
        descs += ".p2align 6\n" + desc
    txt += '.section .rodata,"a"\n' + descs
    open(path, "w").write(txt)


if __name__ == "__main__":
    out = sys.argv[1] if len(sys.argv) > 1 else "cdna_kernels/%s.s" % NAME
    kw = {}
    for arg in sys.argv[2:]:
        k, v = arg.split("=")
        kw[k] = int(v)
    build(out, **kw)
```

```python
import struct
import sys
import os

sys.path.insert(0, os.path.dirname(os.path.abspath(__file__)))
from asmlib import Asm, kernel_wrap

NAME = "concat_heads__gqa_block_cached__mha_block_cached__decode"
HEADER = open(os.path.join(os.path.dirname(os.path.abspath(__file__)), "header.txt")).read()

C_SCALE = 1.4426950408889634 * (128 ** -0.5)


def f32(x):
    return "0x%08x" % struct.unpack("<I", struct.pack("<f", x))[0]


WS_QG = 0
WS_EPOCH = 0x40000
WS_PART = 0x41000
WS_YG = 0x102000
WS_TS = 0x130000
WS_BYTES = WS_TS + 256 * 16 * 64
W_BYTES = 576 * 4096 * 2
DPP = "row_mask:0xf bank_mask:0xf"

L_ENT = 0
L_CNT = 0x31c0
L_Q = 0x3200
L_QP = 0x3600
L_Y = 0x4000
L_WO = 0x6000
LDS_BYTES = L_WO + 0x10000

SPIN_MAX = 100000


def srd(a, d, lo, hi, nbytes):
    a("s_mov_b32 s%d, s%d" % (d, lo))
    a("s_and_b32 s%d, s%d, 0xffff" % (d + 1, hi))
    a("s_mov_b32 s%d, %s" % (d + 2, nbytes if isinstance(nbytes, str) else hex(nbytes)))
    a("s_mov_b32 s%d, 0x20000" % (d + 3))


def reduce16_rows(a, y):
    for k in range(8):
        a("v_permlane32_swap_b32 v%d, v%d" % (y[k], y[k + 8]))
    for k in range(8):
        a("v_add_f32 v%d, v%d, v%d" % (y[k], y[k], y[k + 8]))
    for k in range(4):
        a("v_permlane16_swap_b32 v%d, v%d" % (y[k], y[k + 4]))
    for k in range(4):
        a("v_add_f32 v%d, v%d, v%d" % (y[k], y[k], y[k + 4]))


def gen(T=4, NB=2, mode=1, ts=0, wo_nt=1, sleep=1, sleep2=2, X=4, XP=0, prio=1, XW=2):
    NT = 64 // T
    assert NT % NB == 0
    a = Asm()

    def stamp(idx):
        if not ts:
            return
        a("s_memrealtime s[70:71]")
        a("s_waitcnt lgkmcnt(0)")
        a("v_mov_b32 v126, s70")
        a("v_mov_b32 v127, 0")
        a("s_lshl_b32 s72, s2, 10")
        a("s_lshl_b32 s73, s28, 6")
        a("s_add_u32 s72, s72, s73")
        a("s_add_u32 s72, s72, %d" % (WS_TS + idx * 4))
        a("buffer_store_dword v126, v127, s[24:27], s72 offen")

    a("s_cmp_ge_u32 s2, 256")
    a("s_cbranch_scc1 L_end")
    a("s_load_dwordx16 s[36:51], s[0:1], 0")
    a("s_load_dwordx8 s[4:11], s[0:1], 64")
    a("s_load_dwordx2 s[12:13], s[0:1], 96")
    a("v_lshrrev_b32 v2, 6, v0")
    a("v_and_b32 v3, 63, v0")
    a("v_readfirstlane_b32 s28, v2")
    a("v_lshlrev_b32 v1, 4, v3")
    a("s_mov_b32 s31, %s" % f32(C_SCALE))
    a("s_cmp_ge_u32 s2, 112")
    a("s_cselect_b32 s64, 1, 0")
    a("s_sub_u32 s14, s2, 112")
    a("s_lshr_b32 s33, s14, 3")
    a("s_and_b32 s78, s14, 7")
    a("s_cmp_ge_u32 s33, 9")
    a("s_cselect_b32 s65, 1, 0")
    a("s_mul_i32 s34, s65, 9")
    a("s_sub_u32 s34, s33, s34")
    a("s_lshl_b32 s66, s34, 7")
    a("s_lshl_b32 s79, s33, 13")
    a("s_add_u32 s79, s79, %d" % WS_YG)
    a("s_mul_i32 s29, s2, 3")
    a("s_and_b32 s35, s29, 7")
    a("s_sub_u32 s35, 8, s35")
    a("s_min_u32 s74, s35, 3")
    a("s_waitcnt lgkmcnt(0)")
    a("s_load_dword s69, s[12:13], %d" % WS_EPOCH)
    srd(a, 24, 12, 13, WS_BYTES)
    a("s_cmp_lt_u32 s28, 4")
    a("s_cbranch_scc1 L_helper")

    a("s_sub_u32 s33, s28, 4")
    a("s_lshr_b32 s35, s33, 2")
    a("s_add_u32 s29, s29, s35")
    a("s_cmp_ge_u32 s35, s74")
    a("s_cselect_b32 s67, 512, 0")
    a("s_and_b32 s35, s33, 3")
    a("s_mul_i32 s68, s33, 1056")
    a("s_sub_u32 s14, s29, 256")
    a("s_cmp_lt_u32 s29, 256")
    a("s_cselect_b32 s14, s29, s14")
    a("s_cselect_b32 s4, s38, s48")
    a("s_cselect_b32 s5, s39, s49")
    a("s_cselect_b32 s6, s40, s50")
    a("s_cselect_b32 s7, s41, s51")
    a("s_lshl_b32 s14, s14, 18")
    if mode == 0:
        a("s_lshl_b32 s15, s35, 16")
        a("s_mov_b32 s34, 0x10000")
        stride = T * 1024
    else:
        a("s_mul_i32 s15, s35, %d" % (T * 1024))
        a("s_sub_u32 s34, 0x40000, s15")
        stride = 4 * T * 1024
    a("s_add_u32 s14, s14, s15")
    a("s_add_u32 s4, s4, s14")
    a("s_addc_u32 s5, s5, 0")
    a("s_add_u32 s6, s6, s14")
    a("s_addc_u32 s7, s7, 0")
    srd(a, 16, 4, 5, "s34")
    srd(a, 20, 6, 7, "s34")

    Q = 4
    ACC = 12
    M = 28
    L = 30
    NM = 32
    AL = 34
    S = 36
    TMP = S + 2 * T
    TMP += TMP % 2
    KR = TMP + 8
    KR += (-KR) % 4
    VR = KR + NB * T * 4

    def loads(base, srd_, soff, x=None):
        x = X if x is None else x
        for i in range(T):
            r = base + 4 * i
            if x:
                a("s_waitcnt vmcnt(%d)" % (x - 1))
            if i < 4:
                a("buffer_load_dwordx4 v[%d:%d], v1, s[%d:%d], %s offen offset:%d nt" % (r, r + 3, srd_, srd_ + 3, soff, i * 1024))
            else:
                a("buffer_load_dwordx4 v[%d:%d], v%d, s[%d:%d], %s offen offset:%d nt" % (r, r + 3, 3, srd_, srd_ + 3, soff, (i - 4) * 1024))

    a("v_and_b32 v2, 15, v3")
    a("v_lshlrev_b32 v2, 4, v2")
    a("v_add_u32 v2, s67, v2")
    if T > 4:
        assert T <= 8
        a("v_add_u32 v3, 0x1000, v1")
    a("s_mov_b32 s32, 0")
    for t in range(NB):
        loads(KR + t * T * 4, 16, "s32", XP or X)
        if t == 0:
            a("s_waitcnt lgkmcnt(0)")
            a("s_barrier")
        loads(VR + t * T * 4, 20, "s32", XP or X)
        a("s_add_u32 s32, s32, %d" % stride)
    for k in range(16):
        a("v_mov_b32 v%d, 0" % (ACC + k))
    for h in range(2):
        a("v_mov_b32 v%d, 0xff800000" % (M + h))
        a("v_mov_b32 v%d, 0" % (L + h))
    a("s_add_u32 s69, s69, 1")
    a("s_mov_b32 s34, %d" % (NT // NB))
    stamp(1)
    a("s_barrier")
    a("ds_read_b128 v[%d:%d], v2 offset:%d" % (Q, Q + 3, L_Q))
    a("ds_read_b128 v[%d:%d], v2 offset:%d" % (Q + 4, Q + 7, L_Q + 256))
    a("s_waitcnt lgkmcnt(0)")
    a("s_cmp_lt_u32 s29, 256")
    a("s_cbranch_scc1 L_loopA")

    def body(NH, tag):
        a.label("L_loop" + tag)
        for t in range(NB):
            kb = KR + t * T * 4
            vb = VR + t * T * 4
            a("s_waitcnt vmcnt(%d)" % ((2 * NB - 1) * T))
            for j in range(4):
                for i in range(T):
                    for h in range(NH):
                        s = S + h * T + i
                        a("v_dot2_f32_bf16 v%d, v%d, v%d, %s" % (s, kb + 4 * i + j, Q + 4 * h + j, "0" if j == 0 else "v%d" % s))
            loads(kb, 16, "s32")
            for sh in (8, 4, 2, 1):
                for h in range(NH):
                    for i in range(T):
                        s = S + h * T + i
                        a("v_add_f32_dpp v%d, v%d, v%d row_ror:%d %s" % (s, s, s, sh, DPP))
            for h in range(NH):
                a("v_max3_f32 v%d, v%d, v%d, v%d" % (TMP + h, M + h, S + h * T, S + h * T + 1))
                for i in range(2, T, 2):
                    a("v_max3_f32 v%d, v%d, v%d, v%d" % (TMP + h, TMP + h, S + h * T + i, S + h * T + i + 1))
            for h in range(NH):
                a("v_mul_f32 v%d, s31, v%d" % (NM + h, TMP + h))
            for h in range(NH):
                a("v_fma_f32 v%d, v%d, s31, -v%d" % (AL + h, M + h, NM + h))
                for i in range(T):
                    s = S + h * T + i
                    a("v_fma_f32 v%d, v%d, s31, -v%d" % (s, s, NM + h))
            for h in range(NH):
                a("v_exp_f32 v%d, v%d" % (AL + h, AL + h))
                for i in range(T):
                    s = S + h * T + i
                    a("v_exp_f32 v%d, v%d" % (s, s))
            for h in range(NH):
                a("v_mov_b32 v%d, v%d" % (M + h, TMP + h))
            for h in range(NH):
                sel = "op_sel:[0,0] op_sel_hi:[1,0]" if h == 0 else "op_sel:[0,1] op_sel_hi:[1,1]"
                for j in range(4):
                    r = ACC + 8 * h + 2 * j
                    a("v_pk_mul_f32 v[%d:%d], v[%d:%d], v[%d:%d] %s" % (r, r + 1, r, r + 1, AL, AL + 1, sel))
                a("v_fma_f32 v%d, v%d, v%d, v%d" % (L + h, L + h, AL + h, S + h * T))
            for i in range(1, T):
                for h in range(NH):
                    a("v_add_f32 v%d, v%d, v%d" % (L + h, L + h, S + h * T + i))
            a("s_waitcnt vmcnt(%d)" % ((2 * NB - 1) * T))
            for i in range(T):
                for j in range(4):
                    a("v_lshlrev_b32 v%d, 16, v%d" % (TMP + 2 * j, vb + 4 * i + j))
                    a("v_and_b32 v%d, 0xffff0000, v%d" % (TMP + 2 * j + 1, vb + 4 * i + j))
                for h in range(NH):
                    p = S + h * T + i
                    pe = p - (p % 2)
                    sel = "op_sel:[0,0,0] op_sel_hi:[1,0,1]" if p % 2 == 0 else "op_sel:[0,1,0] op_sel_hi:[1,1,1]"
                    for j in range(4):
                        r = ACC + 8 * h + 2 * j
                        a("v_pk_fma_f32 v[%d:%d], v[%d:%d], v[%d:%d], v[%d:%d] %s" % (r, r + 1, TMP + 2 * j, TMP + 2 * j + 1, pe, pe + 1, r, r + 1, sel))
            loads(vb, 20, "s32")
            a("s_add_u32 s32, s32, %d" % stride)
        a("s_sub_u32 s34, s34, 1")
        a("s_cmp_lg_u32 s34, 0")
        a("s_cbranch_scc1 L_loop" + tag)

    body(1, "B")
    a("s_branch L_merge")
    body(2, "A")
    a.label("L_merge")
    a.nop(3)
    stamp(4)
    a("v_and_b32 v3, 63, v0")
    a("v_and_b32 v2, 15, v3")
    a("v_lshrrev_b32 v3, 4, v3")
    a("v_lshlrev_b32 v2, 5, v2")
    a("v_lshl_add_u32 v2, v3, 3, v2")
    a("v_add_u32 v2, s68, v2")
    a("v_mov_b32 v3, s68")
    for h in range(2):
        if h == 1:
            a("s_cmp_lt_u32 s29, 256")
            a("s_cbranch_scc0 L_merged")
        t1, t2 = TMP, TMP + 1
        a("v_mov_b32 v%d, v%d" % (t1, M + h))
        a("v_mov_b32 v%d, v%d" % (t2, M + h))
        a("v_permlane32_swap_b32 v%d, v%d" % (t1, t2))
        a("v_max_f32 v%d, v%d, v%d" % (t1, t1, t2))
        a("v_mov_b32 v%d, v%d" % (t2, t1))
        a("v_permlane16_swap_b32 v%d, v%d" % (t1, t2))
        a("v_max_f32 v%d, v%d, v%d" % (t1, t1, t2))
        a("v_mul_f32 v%d, s31, v%d" % (t1, t1))
        a("v_fma_f32 v%d, v%d, s31, -v%d" % (AL, M + h, t1))
        a("v_exp_f32 v%d, v%d" % (AL, AL))
        for j in range(4):
            r = ACC + 8 * h + 2 * j
            a("v_pk_mul_f32 v[%d:%d], v[%d:%d], v[%d:%d] op_sel:[0,0] op_sel_hi:[1,0]" % (r, r + 1, r, r + 1, AL, AL + 1))
        a("v_mul_f32 v%d, v%d, v%d" % (t2, L + h, AL))
        a("v_mov_b32 v%d, v%d" % (TMP + 2, t2))
        a("v_permlane32_swap_b32 v%d, v%d" % (t2, TMP + 2))
        a("v_add_f32 v%d, v%d, v%d" % (t2, t2, TMP + 2))
        a("v_mov_b32 v%d, v%d" % (TMP + 2, t2))
        a("v_permlane16_swap_b32 v%d, v%d" % (t2, TMP + 2))
        a("v_add_f32 v%d, v%d, v%d" % (t2, t2, TMP + 2))
        o = [ACC + 8 * h + k for k in range(8)]
        for k in range(4):
            a("v_permlane32_swap_b32 v%d, v%d" % (o[k], o[k + 4]))
        for k in range(4):
            a("v_add_f32 v%d, v%d, v%d" % (o[k], o[k], o[k + 4]))
        for k in range(2):
            a("v_permlane16_swap_b32 v%d, v%d" % (o[k], o[k + 2]))
        for k in range(2):
            a("v_add_f32 v%d, v%d, v%d" % (o[k], o[k], o[k + 2]))
        a("ds_write_b64 v2, v[%d:%d] offset:%d" % (o[0], o[1], L_ENT + h * 528))
        a("ds_write_b64 v3, v[%d:%d] offset:%d" % (t1, t2, L_ENT + h * 528 + 512))
    a.label("L_merged")
    a("s_waitcnt vmcnt(0) lgkmcnt(0)")
    a("s_barrier")
    a("s_branch L_tail")

    a.label("L_helper")
    if prio:
        a("s_setprio 3")
    a("s_cmp_ge_u32 s2, 128")
    a("s_cselect_b32 s14, s46, s36")
    a("s_cselect_b32 s15, s47, s37")
    a("s_cselect_b32 s4, s4, s42")
    a("s_cselect_b32 s5, s5, s43")
    srd(a, 20, 4, 5, W_BYTES)
    srd(a, 16, 14, 15, 2304)
    a("s_and_b32 s33, s2, 1")
    a("s_mul_i32 s33, s33, 288")
    a("v_mul_u32_u24 v4, 72, v2")
    a("v_lshrrev_b32 v5, 3, v3")
    a("v_add3_u32 v4, v4, v5, s33")
    a("v_lshlrev_b32 v5, 1, v4")
    a("v_lshlrev_b32 v4, 13, v4")
    a("v_and_b32 v6, 7, v3")
    a("v_lshl_add_u32 v4, v6, 4, v4")
    a("s_and_b32 s3, s2, 126")
    a("s_lshl_b32 s3, s3, 6")
    a("v_add_u32 v4, s3, v4")
    W0 = 8
    X0 = 44
    QA = 62
    QT = 78
    for i in range(9):
        a("s_mov_b32 s32, %d" % (i * 65536))
        a("buffer_load_dwordx4 v[%d:%d], v4, s[20:23], s32 offen nt" % (W0 + 4 * i, W0 + 4 * i + 3))
    for i in range(9):
        for b in range(2):
            a("buffer_load_ushort v%d, v5, s[16:19], 0 offen offset:%d" % (X0 + 2 * i + b, i * 16 + b * 1152))
    stamp(0)
    a("v_mov_b32 v6, 0")
    a("v_mov_b32 v7, 1")
    a("ds_write_b32 v6, v6 offset:%d" % L_CNT)
    a("s_waitcnt lgkmcnt(0)")
    a("s_barrier")
    srd(a, 52, 10, 11, 256)
    a("s_cmp_eq_u32 s65, 0")
    a("s_cselect_b32 s14, s44, s6")
    a("s_cselect_b32 s15, s45, s7")
    srd(a, 56, 14, 15, W_BYTES)
    a("s_add_u32 s69, s69, 1")
    a("s_lshr_b32 s36, s28, 1")
    a("s_and_b32 s37, s28, 1")
    a("s_cmp_eq_u32 s36, 0")
    a("s_cselect_b32 s38, 0, s74")
    a("s_cselect_b32 s39, s74, 3")
    a("s_add_u32 s40, s29, s38")
    a("s_lshr_b32 s30, s40, 3")
    a("s_cmp_ge_u32 s30, 32")
    a("s_cselect_b32 s41, s37, 0")
    a("s_cmp_lg_u32 s41, 0")
    a("s_cselect_b32 s38, 3, s38")
    a("s_mul_i32 s41, s30, %d" % (8 * 43691))
    a("s_lshr_b32 s41, s41, 17")
    a("s_sub_u32 s41, s2, s41")
    a("s_lshl_b32 s42, s30, 2")
    a("s_add_u32 s42, s42, s41")
    a("s_lshl_b32 s42, s42, 1")
    a("s_add_u32 s42, s42, s37")
    a("s_lshl_b32 s42, s42, 10")
    a("s_add_u32 s42, s42, %d" % WS_PART)
    a("s_and_b32 s33, s30, 15")
    a("s_lshl_b32 s33, s33, 1")
    a("s_add_u32 s33, s33, s37")
    a("s_lshr_b32 s34, s30, 4")
    a("s_and_b32 s35, s30, 31")
    a("s_add_u32 s35, s35, 32")
    a("s_lshr_b32 s43, s30, 5")
    a("s_sub_u32 s43, s43, 1")
    a("s_cmp_lt_u32 s30, 32")
    a("s_cselect_b32 s33, s33, s35")
    a("s_cselect_b32 s34, s34, s43")
    a("s_lshl_b32 s33, s33, 12")
    a("s_lshl_b32 s34, s34, 9")
    a("s_add_u32 s75, s33, s34")
    for k in range(16):
        a("v_mov_b32 v%d, 0" % (QA + k))
    a("s_waitcnt vmcnt(0)")
    stamp(1)
    for k in range(18):
        a("v_lshlrev_b32 v%d, 16, v%d" % (X0 + k, X0 + k))
    for i in range(9):
        for j in range(4):
            a("v_lshlrev_b32 v%d, 16, v%d" % (QT + 2 * j, W0 + 4 * i + j))
            a("v_and_b32 v%d, 0xffff0000, v%d" % (QT + 2 * j + 1, W0 + 4 * i + j))
        for b in range(2):
            xr = X0 + 2 * i
            sel = "op_sel:[0,0,0] op_sel_hi:[1,0,1]" if b == 0 else "op_sel:[0,1,0] op_sel_hi:[1,1,1]"
            for j in range(4):
                r = QA + 8 * b + 2 * j
                a("v_pk_fma_f32 v[%d:%d], v[%d:%d], v[%d:%d], v[%d:%d] %s" % (r, r + 1, QT + 2 * j, QT + 2 * j + 1, xr, xr + 1, r, r + 1, sel))
    y = [QA + k for k in range(16)]
    reduce16_rows(a, y)
    for k in range(4):
        a("v_add_f32_dpp v%d, v%d, v%d row_ror:8 %s" % (y[k], y[k], y[k], DPP))
    a("v_lshrrev_b32 v4, 4, v3")
    a("v_lshrrev_b32 v5, 1, v4")
    a("v_and_b32 v4, 1, v4")
    a("v_lshlrev_b32 v6, 9, v2")
    a("v_lshl_add_u32 v6, v5, 8, v6")
    a("v_lshl_add_u32 v6, v4, 4, v6")
    a("v_and_b32 v4, 7, v3")
    a("v_lshl_add_u32 v6, v4, 5, v6")
    a("ds_write_b64 v6, v[%d:%d] offset:%d" % (y[0], y[1], L_QP))
    a("ds_write_b64 v6, v[%d:%d] offset:%d" % (y[2], y[3], L_QP + 8))
    a("v_mov_b32 v6, 0")
    a("s_waitcnt lgkmcnt(0)")
    a("ds_add_u32 v6, v7 offset:%d" % L_CNT)
    a("s_cmp_lg_u32 s28, 3")
    a("s_cbranch_scc1 L_nopub")
    a.label("L_spin1")
    a("ds_read_b32 v8, v6 offset:%d" % L_CNT)
    a("s_waitcnt lgkmcnt(0)")
    a("v_readfirstlane_b32 s33, v8")
    a("s_cmp_lg_u32 s33, 256")
    a("s_cbranch_scc1 L_spin1")
    a("v_lshlrev_b32 v6, 3, v3")
    for w in range(4):
        a("ds_read_b64 v[%d:%d], v6 offset:%d" % (8 + 2 * w, 9 + 2 * w, L_QP + w * 512))
    a("s_lshl_b32 s32, s2, 10")
    a("v_mov_b32 v18, s69")
    a("v_mov_b32 v19, s69")
    a("s_waitcnt lgkmcnt(0)")
    a("v_pk_add_f32 v[8:9], v[8:9], v[10:11]")
    a("v_pk_add_f32 v[12:13], v[12:13], v[14:15]")
    a("v_pk_add_f32 v[16:17], v[8:9], v[12:13]")
    a("buffer_store_dwordx4 v[16:19], v1, s[24:27], s32 offen offset:%d sc1" % WS_QG)
    stamp(2)
    a.label("L_nopub")
    a("s_cmp_ge_u32 s38, s39")
    a("s_cbranch_scc1 L_noq")
    a("v_and_b32 v8, 31, v3")
    a("v_lshlrev_b32 v8, 4, v8")
    a("v_lshrrev_b32 v9, 5, v3")
    a("v_lshl_add_u32 v8, v9, 11, v8")
    a("s_mov_b32 s33, 0")
    a.label("L_pollq")
    a("buffer_load_dwordx4 v[12:15], v8, s[24:27], s75 offen offset:%d sc1" % WS_QG)
    a("buffer_load_dwordx4 v[16:19], v8, s[24:27], s75 offen offset:%d sc1" % (WS_QG + 1024))
    a("s_add_u32 s33, s33, 1")
    a("s_waitcnt vmcnt(0)")
    a("v_cmp_eq_u32 vcc, s69, v14")
    a("v_cmp_eq_u32 s[76:77], s69, v18")
    a("s_and_b64 s[76:77], vcc, s[76:77]")
    a("s_cmp_eq_u64 s[76:77], -1")
    a("s_cbranch_scc1 L_pollq_done")
    a("s_sleep %d" % sleep)
    a("s_cmp_lt_u32 s33, %d" % SPIN_MAX)
    a("s_cbranch_scc1 L_pollq")
    a.label("L_pollq_done")
    a("v_pk_add_f32 v[12:13], v[12:13], v[16:17]")
    a("v_lshlrev_b32 v8, 2, v3")
    a("v_lshl_add_u32 v8, v2, 8, v8")
    a("v_cvt_pk_bf16_f32 v12, v12, v13")
    a("ds_write_b32 v8, v12 offset:%d" % L_Q)
    stamp(3)
    a.label("L_noq")
    a("s_waitcnt lgkmcnt(0)")
    a("s_barrier")
    a("s_cmp_lg_u32 s28, 3")
    a("s_cbranch_scc1 L_nobook")
    a("v_mov_b32 v18, s69")
    a("v_mov_b32 v6, 0")
    a("v_cmp_eq_u32 vcc, 0, v3")
    a("s_and_saveexec_b64 s[34:35], vcc")
    a("buffer_atomic_add v7, v6, s[52:55], 0 offen sc0 sc1")
    a("s_waitcnt vmcnt(0)")
    a("v_readfirstlane_b32 s33, v7")
    a("s_cmp_lg_u32 s33, 255")
    a("s_cbranch_scc1 L_nobump")
    a("s_mov_b32 s33, %d" % WS_EPOCH)
    a("buffer_store_dword v18, v6, s[24:27], s33 offen sc1")
    a.label("L_nobump")
    a("s_mov_b64 exec, s[34:35]")
    a.label("L_nobook")
    a("s_cmp_eq_u32 s64, 0")
    a("s_cbranch_scc1 L_nowo")
    a("s_lshl_b32 s35, s78, 9")
    a("s_lshl_b32 s34, s28, 7")
    a("s_add_u32 s35, s35, s34")
    a("v_lshrrev_b32 v4, 3, v3")
    a("v_lshl_add_u32 v4, v4, 2, s35")
    a("v_mul_u32_u24 v4, 1152, v4")
    a("v_and_b32 v5, 7, v3")
    a("v_lshl_add_u32 v4, v5, 4, v4")
    a("v_add_u32 v4, s66, v4")
    a("s_lshl_b32 s35, s28, 14")
    a("s_add_u32 s35, s35, %d" % L_WO)
    for i in range(16):
        a("s_mov_b32 m0, s35")
        a("s_mov_b32 s34, %d" % (((i >> 2) * 32 + (i & 3)) * 1152))
        if XW:
            a("s_waitcnt vmcnt(%d)" % (XW - 1))
        a("buffer_load_dwordx4 v4, s[56:59], s34 offen %slds" % ("nt " if wo_nt else ""))
        a("s_add_u32 s35, s35, 1024")
    a.label("L_nowo")
    a("s_mul_i32 s43, s37, 528")
    a("s_lshl_b32 s44, s38, 2")
    a("s_lshl_b32 s45, s39, 2")
    a("v_max_u32 v4, s44, v3")
    a("s_sub_u32 s46, s45, 1")
    a("v_min_u32 v4, s46, v4")
    a("v_mul_u32_u24 v5, 1056, v4")
    a("v_add_u32 v5, s43, v5")
    a("v_lshlrev_b32 v8, 3, v3")
    a("v_add_u32 v8, s43, v8")
    a("v_mov_b32 v9, 0xff800000")
    a("v_mov_b32 v12, 0")
    a("v_mov_b32 v13, 0")
    a("v_mov_b32 v14, s69")
    a("v_and_b32 v16, 1, v3")
    a("s_waitcnt vmcnt(0)")
    a("s_barrier")
    a("s_cmp_ge_u32 s38, s39")
    a("s_cbranch_scc1 L_tail")
    a("ds_read_b64 v[6:7], v5 offset:%d" % (L_ENT + 512))
    EO = 40
    for u in range(3):
        a("s_cmp_le_u32 s38, %d" % u)
        a("s_cbranch_scc0 L_skr%d" % u)
        a("s_cmp_gt_u32 s39, %d" % u)
        a("s_cbranch_scc0 L_skr%d" % u)
        for e in range(4 * u, 4 * u + 4):
            a("ds_read_b64 v[%d:%d], v8 offset:%d" % (EO + 2 * e, EO + 2 * e + 1, L_ENT + e * 1056))
        a.label("L_skr%d" % u)
    a("v_cmp_eq_u32 vcc, v4, v3")
    a("s_waitcnt lgkmcnt(0)")
    a("v_cndmask_b32 v6, v9, v6, vcc")
    a("v_mov_b32 v10, v6")
    for sh in (8, 4, 2, 1):
        a("v_max_f32_dpp v10, v10, v10 row_ror:%d %s" % (sh, DPP))
    a("v_sub_f32 v6, v6, v10")
    a("v_exp_f32 v6, v6")
    a("v_mul_f32 v11, v6, v7")
    for sh in (8, 4, 2, 1):
        a("v_add_f32_dpp v11, v11, v11 row_ror:%d %s" % (sh, DPP))
    for u in range(3):
        a("s_cmp_le_u32 s38, %d" % u)
        a("s_cbranch_scc0 L_skf%d" % u)
        a("s_cmp_gt_u32 s39, %d" % u)
        a("s_cbranch_scc0 L_skf%d" % u)
        for e in range(4 * u, 4 * u + 4):
            a("v_readlane_b32 s%d, v6, %d" % (48 + e % 4, e))
        for e in range(4 * u, 4 * u + 4):
            a("v_fma_f32 v12, v%d, s%d, v12" % (EO + 2 * e, 48 + e % 4))
            a("v_fma_f32 v13, v%d, s%d, v13" % (EO + 2 * e + 1, 48 + e % 4))
        a.label("L_skf%d" % u)
        a.nop(2)
    a("v_readfirstlane_b32 s48, v10")
    a("v_readfirstlane_b32 s49, v11")
    a("v_cmp_eq_u32 vcc, 0, v16")
    a("v_mov_b32 v15, s49")
    a("v_mov_b32 v17, s48")
    a("v_cndmask_b32 v15, v15, v17, vcc")
    a("buffer_store_dwordx4 v[12:15], v1, s[24:27], s42 offen sc1")
    stamp(5)

    a.label("L_tail")
    a("s_cmp_eq_u32 s64, 0")
    a("s_cbranch_scc1 L_end")
    a.nop(2)
    a("v_lshrrev_b32 v2, 6, v0")
    a("v_and_b32 v3, 63, v0")
    a("v_lshlrev_b32 v1, 4, v3")
    a("v_lshl_add_u32 v4, v2, 12, v1")
    a("v_add_u32 v4, %d, v4" % L_WO)
    PO = 8
    WU = 72
    Y = 104
    TT = 120
    for i in range(4):
        a("ds_read_b128 v[%d:%d], v4 offset:%d" % (PO + 4 * i, PO + 4 * i + 3, i * 1024))
    a("v_and_b32 v5, 3, v2")
    a("v_lshrrev_b32 v6, 3, v3")
    a("v_lshlrev_b32 v5, 8, v5")
    a("v_lshl_add_u32 v5, v6, 5, v5")
    a("s_lshl_b32 s45, s78, 2")
    a("s_lshr_b32 s33, s28, 2")
    a("s_add_u32 s45, s45, s33")
    for b in range(2):
        a("s_lshr_b32 s33, s45, 1")
        a("s_add_u32 s33, s33, %d" % (16 * b))
        a("s_add_u32 s34, s45, %d" % (32 + 32 * b))
        a("s_and_b32 s35, s45, 1")
        a("s_lshl_b32 s35, s35, 10")
        a("s_cmp_eq_u32 s65, 0")
        a("s_cselect_b32 s33, s33, s34")
        a("s_cselect_b32 s34, s35, 0")
        a("s_lshl_b32 s35, s33, 13")
        a("s_add_u32 s35, s35, s34")
        a("s_add_u32 s35, s35, %d" % WS_PART)
        a("s_mul_i32 s36, s33, 43691")
        a("s_lshr_b32 s36, s36, 17")
        a("s_mul_i32 s36, s36, 3")
        a("s_sub_u32 s36, s33, s36")
        a("s_cmp_eq_u32 s36, 1")
        a("s_cselect_b32 s%d, 0, 0xff800000" % (40 + b))
        a("s_cselect_b32 s37, 3, 2")
        a("s_lshl_b32 s37, s37, 11")
        for s in range(4):
            if s < 3:
                a("s_add_u32 s%d, s35, %d" % (80 + b * 4 + s, s * 2048))
            else:
                a("s_add_u32 s%d, s35, s37" % (80 + b * 4 + s))
    for k in range(16):
        a("v_mov_b32 v%d, 0" % (Y + k))
    a("s_waitcnt lgkmcnt(0)")
    for i in range(4):
        for j in range(4):
            a("v_lshlrev_b32 v%d, 16, v%d" % (WU + 8 * i + 2 * j, PO + 4 * i + j))
            a("v_and_b32 v%d, 0xffff0000, v%d" % (WU + 8 * i + 2 * j + 1, PO + 4 * i + j))
    a("s_mov_b32 s44, 0")
    a("s_mov_b32 s33, 0")
    a.label("L_round")
    for b in range(2):
        a("s_bitcmp1_b32 s44, %d" % b)
        a("s_cbranch_scc1 L_skl%d" % b)
        for s in range(4):
            r = PO + (b * 4 + s) * 8
            a("buffer_load_dwordx4 v[%d:%d], v5, s[24:27], s%d offen sc1" % (r, r + 3, 80 + b * 4 + s))
            a("buffer_load_dwordx4 v[%d:%d], v5, s[24:27], s%d offen offset:16 sc1" % (r + 4, r + 7, 80 + b * 4 + s))
        a.label("L_skl%d" % b)
    a("s_add_u32 s33, s33, 1")
    a("s_waitcnt vmcnt(0)")
    for b in range(2):
        p = [PO + (b * 4 + s) * 8 for s in range(4)]
        a("s_bitcmp1_b32 s44, %d" % b)
        a("s_cbranch_scc1 L_skc%d" % b)
        a("v_xor_b32 v%d, s69, v%d" % (TT, p[0] + 2))
        a("v_xor_b32 v%d, s69, v%d" % (TT + 1, p[0] + 6))
        for s in range(1, 4):
            a("v_xor_b32 v%d, s69, v%d" % (p[s] + 2, p[s] + 2))
            a("v_xor_b32 v%d, s69, v%d" % (p[s] + 6, p[s] + 6))
            a("v_or3_b32 v%d, v%d, v%d, v%d" % (TT, TT, p[s] + 2, p[s] + 6))
        a("v_or_b32 v%d, v%d, v%d" % (TT, TT, TT + 1))
        a("v_cmp_ne_u32 vcc, 0, v%d" % TT)
        a("s_cbranch_vccnz L_skc%d" % b)
        a("s_bitset1_b32 s44, %d" % b)
        m = [p[s] + 3 for s in range(4)]
        l = [p[s] + 7 for s in range(4)]
        a("v_add_f32 v%d, s%d, v%d" % (m[3], 40 + b, m[3]))
        a("v_max3_f32 v%d, v%d, v%d, v%d" % (TT, m[0], m[1], m[2]))
        a("v_max_f32 v%d, v%d, v%d" % (TT, TT, m[3]))
        for s in range(4):
            a("v_sub_f32 v%d, v%d, v%d" % (m[s], m[s], TT))
        for s in range(4):
            a("v_exp_f32 v%d, v%d" % (m[s], m[s]))
        hi = "op_sel:[0,1] op_sel_hi:[1,1]"
        hi3 = "op_sel:[0,1,0] op_sel_hi:[1,1,1]"
        a("v_mul_f32 v%d, v%d, v%d" % (TT, m[0], l[0]))
        a("v_pk_mul_f32 v[%d:%d], v[%d:%d], v[%d:%d] %s" % (TT + 2, TT + 3, p[0], p[0] + 1, m[0] - 1, m[0], hi))
        a("v_pk_mul_f32 v[%d:%d], v[%d:%d], v[%d:%d] %s" % (TT + 4, TT + 5, p[0] + 4, p[0] + 5, m[0] - 1, m[0], hi))
        for s in range(1, 4):
            a("v_fma_f32 v%d, v%d, v%d, v%d" % (TT, m[s], l[s], TT))
            a("v_pk_fma_f32 v[%d:%d], v[%d:%d], v[%d:%d], v[%d:%d] %s" % (TT + 2, TT + 3, p[s], p[s] + 1, m[s] - 1, m[s], TT + 2, TT + 3, hi3))
            a("v_pk_fma_f32 v[%d:%d], v[%d:%d], v[%d:%d], v[%d:%d] %s" % (TT + 4, TT + 5, p[s] + 4, p[s] + 5, m[s] - 1, m[s], TT + 4, TT + 5, hi3))
        a("v_rcp_f32 v%d, v%d" % (TT, TT))
        a("v_pk_mul_f32 v[%d:%d], v[%d:%d], v[%d:%d] op_sel:[0,0] op_sel_hi:[1,0]" % (TT + 2, TT + 3, TT + 2, TT + 3, TT, TT + 1))
        a("v_pk_mul_f32 v[%d:%d], v[%d:%d], v[%d:%d] op_sel:[0,0] op_sel_hi:[1,0]" % (TT + 4, TT + 5, TT + 4, TT + 5, TT, TT + 1))
        a("v_cvt_pk_bf16_f32 v%d, v%d, v%d" % (TT, TT + 2, TT + 3))
        a("v_cvt_pk_bf16_f32 v%d, v%d, v%d" % (TT + 1, TT + 4, TT + 5))
        a("v_lshlrev_b32 v%d, 16, v%d" % (TT + 2, TT))
        a("v_and_b32 v%d, 0xffff0000, v%d" % (TT + 3, TT))
        a("v_lshlrev_b32 v%d, 16, v%d" % (TT + 4, TT + 1))
        a("v_and_b32 v%d, 0xffff0000, v%d" % (TT + 5, TT + 1))
        for i in range(4):
            w = WU + 8 * i
            op = TT + 2 + (i & 2)
            sel = "op_sel:[0,0,0] op_sel_hi:[1,0,1]" if (i & 1) == 0 else hi3
            for j in range(4):
                r = Y + 8 * b + 2 * j
                a("v_pk_fma_f32 v[%d:%d], v[%d:%d], v[%d:%d], v[%d:%d] %s" % (r, r + 1, w + 2 * j, w + 2 * j + 1, op, op + 1, r, r + 1, sel))
        a.label("L_skc%d" % b)
    a("s_cmp_eq_u32 s44, 3")
    a("s_cbranch_scc1 L_rounds_done")
    a("s_sleep %d" % sleep2)
    a("s_cmp_lt_u32 s33, %d" % SPIN_MAX)
    a("s_cbranch_scc1 L_round")
    a.label("L_rounds_done")
    stamp(6)
    a.nop(2)
    y = [Y + k for k in range(16)]
    reduce16_rows(a, y)
    for k in range(4):
        a("v_add_f32_dpp v%d, v%d, v%d row_ror:8 %s" % (y[k], y[k], y[k], DPP))
    a("v_lshrrev_b32 v4, 4, v3")
    a("v_lshrrev_b32 v5, 1, v4")
    a("v_and_b32 v4, 1, v4")
    a("v_lshlrev_b32 v6, 9, v2")
    a("v_lshl_add_u32 v6, v5, 8, v6")
    a("v_lshl_add_u32 v6, v4, 4, v6")
    a("v_and_b32 v4, 7, v3")
    a("v_lshl_add_u32 v6, v4, 5, v6")
    a("ds_write_b128 v6, v[%d:%d] offset:%d" % (Y, Y + 3, L_Y))
    a("s_waitcnt lgkmcnt(0)")
    a("s_barrier")
    a("s_cmp_lg_u32 s28, 0")
    a("s_cbranch_scc1 L_end")
    a("v_lshlrev_b32 v6, 3, v3")
    for w in range(16):
        a("ds_read_b64 v[%d:%d], v6 offset:%d" % (8 + 2 * w, 9 + 2 * w, L_Y + w * 512))
    a("s_lshl_b32 s32, s78, 10")
    a("s_add_u32 s32, s32, s79")
    a("v_mov_b32 v42, s69")
    a("v_mov_b32 v43, s69")
    srd(a, 60, 8, 9, 4608)
    for st in (8, 4, 2):
        if st == 8:
            a("s_waitcnt lgkmcnt(0)")
        for k in range(st):
            a("v_pk_add_f32 v[%d:%d], v[%d:%d], v[%d:%d]" % (8 + 2 * k, 9 + 2 * k, 8 + 2 * k, 9 + 2 * k, 8 + 2 * (k + st), 9 + 2 * (k + st)))
    a("v_pk_add_f32 v[40:41], v[8:9], v[10:11]")
    a("buffer_store_dwordx4 v[40:43], v1, s[24:27], s32 offen sc1")
    stamp(8)
    a("s_cmp_lg_u32 s78, 0")
    a("s_cbranch_scc1 L_end")
    a("v_lshrrev_b32 v5, 5, v3")
    a("v_mul_u32_u24 v5, 2304, v5")
    a("v_and_b32 v6, 31, v3")
    a("v_lshl_add_u32 v5, v6, 2, v5")
    a("s_mul_i32 s32, s65, 1152")
    a("s_add_u32 s32, s32, s66")
    a("s_add_u32 s34, s79, 4096")
    a("s_mov_b32 s33, 0")
    a.label("L_polly")
    for k in range(1, 8):
        a("buffer_load_dwordx4 v[%d:%d], v1, s[24:27], s%d offen offset:%d sc1" % (8 + 4 * k, 11 + 4 * k, 79 if k < 4 else 34, (k & 3) * 1024))
    a("s_add_u32 s33, s33, 1")
    a("s_waitcnt vmcnt(0)")
    a("v_xor_b32 v8, s69, v14")
    for k in range(2, 8, 2):
        a("v_xor_b32 v9, s69, v%d" % (10 + 4 * k))
        a("v_xor_b32 v10, s69, v%d" % (14 + 4 * k))
        a("v_or3_b32 v8, v8, v9, v10")
    a("v_cmp_ne_u32 vcc, 0, v8")
    a("s_cbranch_vccz L_polly_done")
    a("s_sleep %d" % sleep)
    a("s_cmp_lt_u32 s33, %d" % SPIN_MAX)
    a("s_cbranch_scc1 L_polly")
    a.label("L_polly_done")
    a("v_pk_add_f32 v[12:13], v[12:13], v[16:17]")
    a("v_pk_add_f32 v[20:21], v[20:21], v[24:25]")
    a("v_pk_add_f32 v[28:29], v[28:29], v[32:33]")
    a("v_pk_add_f32 v[36:37], v[36:37], v[40:41]")
    a("v_pk_add_f32 v[12:13], v[12:13], v[20:21]")
    a("v_pk_add_f32 v[28:29], v[28:29], v[36:37]")
    a("v_pk_add_f32 v[12:13], v[12:13], v[28:29]")
    a("v_cvt_pk_bf16_f32 v8, v12, v13")
    a("buffer_store_dword v8, v5, s[60:63], s32 offen")
    stamp(7)
    a.label("L_end")
    a("s_endpgm")
    return a


def build(path, **kw):
    a = gen(**kw)
    txt = HEADER
    txt += "; @launch grid=(256,1,1) block=(1024,1,1) lds=%d\n" % LDS_BYTES
    txt += '.amdgcn_target "amdgcn-amd-amdhsa--gfx950"\n.text\n'
    body, desc = kernel_wrap(NAME + "_kernel", a)
    txt += body
    txt += '.section .rodata,"a"\n.p2align 6\n' + desc
    open(path, "w").write(txt)


if __name__ == "__main__":
    out = sys.argv[1] if len(sys.argv) > 1 else "cdna_kernels/%s.s" % NAME
    kw = {}
    for arg in sys.argv[2:]:
        k, v = arg.split("=")
        kw[k] = int(v)
    build(out, **kw)
```

```python
import struct
import sys
import os

sys.path.insert(0, os.path.dirname(os.path.abspath(__file__)))
from asmlib import Asm, kernel_wrap

NAME = "concat_heads__gqa_block_cached__mha_block_cached__decode"
HEADER = open(os.path.join(os.path.dirname(os.path.abspath(__file__)), "header.txt")).read()

C_SCALE = 1.4426950408889634 * (128 ** -0.5)


def f32(x):
    return "0x%08x" % struct.unpack("<I", struct.pack("<f", x))[0]


WS_QG = 0
WS_EPOCH = 0x40000
WS_CTR = 0x41000
WS_YG = 0x44000
WS_PART = 0x80000
WS_TS = 0x200000
WS_TS2 = WS_TS + 256 * 16 * 64
WS_BYTES = WS_TS2 + 256 * 256
W_BYTES = 576 * 4096 * 2
DPP = "row_mask:0xf bank_mask:0xf"
NEG = "0xff7fffff"

L_CNT = 0
L_RING = 0x100
L_Q = 0x500
L_QP = 0xb00
L_Y = 0x1300
L_O = 0x1b00
L_ENT = 0x2000
ENT_P = 12 * 1056
LDS_BYTES = L_ENT + 3 * ENT_P

SPIN_MAX = 100000


def srd(a, d, lo, hi, nbytes):
    a("s_mov_b32 s%d, s%d" % (d, lo))
    a("s_and_b32 s%d, s%d, 0xffff" % (d + 1, hi))
    a("s_mov_b32 s%d, %s" % (d + 2, nbytes if isinstance(nbytes, str) else hex(nbytes)))
    a("s_mov_b32 s%d, 0x20000" % (d + 3))


def reduce16_rows(a, y):
    for k in range(8):
        a("v_permlane32_swap_b32 v%d, v%d" % (y[k], y[k + 8]))
    for k in range(8):
        a("v_add_f32 v%d, v%d, v%d" % (y[k], y[k], y[k + 8]))
    for k in range(4):
        a("v_permlane16_swap_b32 v%d, v%d" % (y[k], y[k + 4]))
    for k in range(4):
        a("v_add_f32 v%d, v%d, v%d" % (y[k], y[k], y[k + 4]))


def gen(NBP=5, ts=0, sleep=1, sleep2=1, XP=3, prio=1, XW=2, LOOK=8, PAIRTH=336, GATE=200, ROT=0):
    T = 2
    a = Asm()
    uid = [0]

    def lab(p):
        uid[0] += 1
        return "L_%s%d" % (p, uid[0])

    def stamp(idx):
        if not ts:
            return
        a("s_memrealtime s[70:71]")
        a("s_waitcnt lgkmcnt(0)")
        a("v_mov_b32 v126, s70")
        a("v_mov_b32 v127, 0")
        a("s_lshl_b32 s72, s2, 10")
        a("s_lshl_b32 s73, s28, 6")
        a("s_add_u32 s72, s72, s73")
        a("s_add_u32 s72, s72, %d" % (WS_TS + idx * 4))
        a("buffer_store_dword v126, v127, s[24:27], s72 offen")
        if idx in (0, 4):
            a("v_mov_b32 v125, s100")
            a("buffer_store_dword v125, v127, s[24:27], s72 offen offset:%d" % ((9 - idx) * 4))

    a("s_cmp_ge_u32 s2, 256")
    a("s_cbranch_scc1 L_end")
    if ts:
        a("s_memrealtime s[100:101]")
    a("s_load_dwordx16 s[36:51], s[0:1], 0")
    a("s_load_dwordx8 s[4:11], s[0:1], 64")
    a("s_load_dwordx2 s[12:13], s[0:1], 96")
    a("v_lshrrev_b32 v2, 6, v0")
    a("v_and_b32 v3, 63, v0")
    a("v_readfirstlane_b32 s28, v2")
    a("v_lshlrev_b32 v1, 4, v3")
    a("s_mov_b32 s31, %s" % f32(C_SCALE))
    a("s_lshr_b32 s96, s2, 3")
    a("s_and_b32 s91, s2, 7")
    a("s_lshl_b32 s14, s96, 2")
    a("s_add_u32 s14, s14, s91")
    a("s_lshr_b32 s15, s2, 4")
    a("s_add_u32 s15, s15, 128")
    a("s_and_b32 s33, s2, 15")
    a("s_cmp_eq_u32 s33, 4")
    a("s_cselect_b32 s64, 1, 0")
    a("s_cselect_b32 s14, s15, s14")
    a("s_cmp_lt_u32 s91, 4")
    a("s_cselect_b32 s64, 1, s64")
    a("s_lshr_b32 s33, s14, 3")
    a("s_and_b32 s78, s14, 7")
    a("s_cmp_ge_u32 s33, 9")
    a("s_cselect_b32 s65, 1, 0")
    a("s_mul_i32 s34, s65, 9")
    a("s_sub_u32 s34, s33, s34")
    a("s_lshl_b32 s66, s34, 7")
    a("s_lshl_b32 s79, s33, 13")
    a("s_add_u32 s79, s79, %d" % WS_YG)
    a("s_lshl_b32 s90, s96, 10")
    a("s_mul_i32 s97, s96, 3")
    a("s_mov_b32 s92, 2")
    a("s_mul_i32 s86, s96, %d" % (ROT * 8))
    a("s_waitcnt lgkmcnt(0)")
    a("s_load_dword s69, s[12:13], %d" % WS_EPOCH)
    srd(a, 24, 12, 13, WS_BYTES)
    a("s_cmp_lt_u32 s28, 4")
    a("s_cbranch_scc1 L_helper")

    Q = 4
    ACC = 12
    L = 28
    NM = 30
    AL = 32
    S = 34
    TMP = 38
    VT = 46
    R0 = 48

    def kslot(n):
        return R0 + n * 16

    def vslot(n):
        return R0 + n * 16 + 8

    def addr():
        a("s_and_b32 s33, s33, 7")
        a("s_lshl_b32 s35, s35, 3")
        a("s_add_u32 s35, s35, s33")
        a("s_lshr_b32 s88, s35, 10")
        a("s_min_u32 s88, s88, 3")
        if ROT:
            a("s_add_u32 s33, s35, s86")
            a("s_and_b32 s33, s33, 0x3ff")
        else:
            a("s_and_b32 s33, s35, 0x3ff")
        a("s_add_u32 s33, s33, s90")
        a("s_lshr_b32 s35, s35, 11")
        a("s_lshl_b32 s35, s35, 15")
        a("s_add_u32 s35, s35, s33")
        a("s_cmp_eq_u32 s88, 1")
        a("s_cselect_b32 s16, s38, s48")
        a("s_cselect_b32 s17, s39, s49")
        a("s_cselect_b32 s20, s40, s50")
        a("s_cselect_b32 s21, s41, s51")
        a("s_cselect_b32 s18, s94, s95")
        a("s_cselect_b32 s22, s94, s95")
        a("s_lshl_b32 s32, s35, 11")
        a("s_cmp_eq_u32 s88, 3")
        a("s_cselect_b32 s32, s95, s32")

    def lookup():
        l1 = lab("lk")
        l2 = lab("lk")
        a("v_mov_b32 v%d, 1" % (VT + 1))
        a("s_mov_b64 exec, 1")
        a("ds_add_rtn_u32 v%d, v3, v%d offset:%d" % (VT, VT + 1, L_CNT + 4))
        a("s_mov_b64 exec, -1")
        a("s_mov_b32 s87, 0")
        a("s_waitcnt lgkmcnt(0)")
        a("v_readfirstlane_b32 s33, v%d" % VT)
        if ts == 2:
            l3 = lab("lk")
            a("s_and_b32 s34, s33, 15")
            a("s_cmp_lg_u32 s34, 0")
            a("s_cbranch_scc1 %s" % l3)
            a("s_memrealtime s[70:71]")
            a("s_lshr_b32 s72, s33, 2")
            a("s_lshl_b32 s73, s2, 8")
            a("s_add_u32 s72, s72, s73")
            a("s_add_u32 s72, s72, %d" % WS_TS2)
            a("s_waitcnt lgkmcnt(0)")
            a("v_mov_b32 v%d, s70" % VT)
            a("buffer_store_dword v%d, v3, s[24:27], s72 offen" % VT)
            a.label(l3)
        a("s_lshr_b32 s34, s33, 3")
        a("s_lshl_b32 s34, s34, 2")
        a("v_mov_b32 v%d, s34" % VT)
        a.label(l1)
        a("ds_read_b32 v%d, v%d offset:%d" % (VT + 1, VT, L_RING))
        a("s_add_u32 s87, s87, 1")
        a("s_waitcnt lgkmcnt(0)")
        a("v_readfirstlane_b32 s35, v%d" % (VT + 1))
        a("s_cmp_lg_u32 s35, -1")
        a("s_cbranch_scc1 %s" % l2)
        a("s_sleep 1")
        a("s_cmp_lt_u32 s87, %d" % (SPIN_MAX * 10))
        a("s_cbranch_scc1 %s" % l1)
        a("s_mov_b32 s35, 400")
        a.label(l2)
        addr()

    def loads(base, srd_, x=0):
        for i in range(T):
            r = base + 4 * i
            if x:
                a("s_waitcnt vmcnt(%d)" % (x - 1))
            a("buffer_load_dwordx4 v[%d:%d], v1, s[%d:%d], s32 offen offset:%d nt" % (r, r + 3, srd_, srd_ + 3, i * 1024))

    a("s_sub_u32 s29, s28, 4")
    a("s_mul_i32 s93, s29, 1056")
    a("s_add_u32 s93, s93, %d" % L_ENT)
    a("s_and_b32 s39, s39, 0xffff")
    a("s_and_b32 s41, s41, 0xffff")
    a("s_and_b32 s49, s49, 0xffff")
    a("s_and_b32 s51, s51, 0xffff")
    a("s_mov_b32 s94, 0x4000000")
    a("s_mov_b32 s95, 0x8000000")
    a("s_mov_b32 s19, 0x20000")
    a("s_mov_b32 s23, 0x20000")
    for n in range(NBP):
        a("s_add_u32 s33, s29, %d" % (12 * n))
        a("s_lshr_b32 s35, s33, 3")
        a("s_lshl_b32 s35, s35, 3")
        a("s_add_u32 s35, s35, s91")
        addr()
        loads(kslot(n), 16, XP)
        loads(vslot(n), 20, XP)
        if n == 0:
            a("v_and_b32 v2, 15, v3")
            a("v_lshlrev_b32 v2, 4, v2")
            a("v_mov_b32 v3, 0")
            a("s_waitcnt lgkmcnt(0)")
            a("s_barrier")
    for k in range(16):
        a("v_mov_b32 v%d, 0" % (ACC + k))
    for h in range(2):
        a("v_mov_b32 v%d, %s" % (NM + h, NEG))
        a("v_mov_b32 v%d, 0" % (L + h))
    a("s_add_u32 s69, s69, 1")
    a("s_mov_b32 s30, 0")
    lookup()
    stamp(1)
    a("s_barrier")
    a("ds_read_b128 v[%d:%d], v2 offset:%d" % (Q, Q + 3, L_Q))
    a("ds_read_b128 v[%d:%d], v2 offset:%d" % (Q + 4, Q + 7, L_Q + 256))
    a("s_waitcnt lgkmcnt(0)")

    def tile(NH, kb, vb, wk, wv, issue):
        a("s_waitcnt vmcnt(%d)" % wk)
        for j in range(4):
            for i in range(T):
                for h in range(NH):
                    s = S + h * T + i
                    a("v_dot2_f32_bf16 v%d, v%d, v%d, %s" % (s, kb + 4 * i + j, Q + 4 * h + j, "0" if j == 0 else "v%d" % s))
        if issue:
            loads(kb, 16)
        for sh in (8, 4, 2, 1):
            for h in range(NH):
                for i in range(T):
                    s = S + h * T + i
                    a("v_add_f32_dpp v%d, v%d, v%d row_ror:%d %s" % (s, s, s, sh, DPP))
        for h in range(NH):
            for i in range(T):
                s = S + h * T + i
                a("v_mul_f32 v%d, s31, v%d" % (s, s))
        for h in range(NH):
            a("v_max3_f32 v%d, v%d, v%d, v%d" % (TMP + h, NM + h, S + h * T, S + h * T + 1))
        for h in range(NH):
            a("v_sub_f32 v%d, v%d, v%d" % (AL + h, NM + h, TMP + h))
            for i in range(T):
                s = S + h * T + i
                a("v_sub_f32 v%d, v%d, v%d" % (s, s, TMP + h))
        for h in range(NH):
            a("v_exp_f32 v%d, v%d" % (AL + h, AL + h))
            for i in range(T):
                s = S + h * T + i
                a("v_exp_f32 v%d, v%d" % (s, s))
        for h in range(NH):
            a("v_mov_b32 v%d, v%d" % (NM + h, TMP + h))
        for h in range(NH):
            sel = "op_sel:[0,0] op_sel_hi:[1,0]" if h == 0 else "op_sel:[0,1] op_sel_hi:[1,1]"
            for j in range(4):
                r = ACC + 8 * h + 2 * j
                a("v_pk_mul_f32 v[%d:%d], v[%d:%d], v[%d:%d] %s" % (r, r + 1, r, r + 1, AL, AL + 1, sel))
            a("v_fma_f32 v%d, v%d, v%d, v%d" % (L + h, L + h, AL + h, S + h * T))
        for i in range(1, T):
            for h in range(NH):
                a("v_add_f32 v%d, v%d, v%d" % (L + h, L + h, S + h * T + i))
        a("s_waitcnt vmcnt(%d)" % wv)
        for i in range(T):
            for j in range(4):
                a("v_lshlrev_b32 v%d, 16, v%d" % (TMP + 2 * j, vb + 4 * i + j))
                a("v_and_b32 v%d, 0xffff0000, v%d" % (TMP + 2 * j + 1, vb + 4 * i + j))
            for h in range(NH):
                p = S + h * T + i
                pe = p - (p % 2)
                sel = "op_sel:[0,0,0] op_sel_hi:[1,0,1]" if p % 2 == 0 else "op_sel:[0,1,0] op_sel_hi:[1,1,1]"
                for j in range(4):
                    r = ACC + 8 * h + 2 * j
                    a("v_pk_fma_f32 v[%d:%d], v[%d:%d], v[%d:%d], v[%d:%d] %s" % (r, r + 1, TMP + 2 * j, TMP + 2 * j + 1, pe, pe + 1, r, r + 1, sel))
        if issue:
            loads(vb, 20)

    def path(NH, tag):
        tot = 4 * NBP
        if NH == 1:
            tile(NH, kslot(0), vslot(0), tot - 2, tot - 2, True)
            for n in range(1, NBP):
                rem = 4 * (NBP - n)
                tile(NH, kslot(n), vslot(n), rem - 2 + 4, rem - 4 + 4, False)
        a.label("L_next" + tag)
        a("s_mov_b32 s89, s88")
        a("s_cmp_eq_u32 s89, 3")
        a("s_cbranch_scc1 L_flush")
        lookup()
        a("s_cmp_lg_u32 s89, s30")
        a("s_cbranch_scc1 L_flush")
        a.label("L_step" + tag)
        tile(NH, kslot(0), vslot(0), 2, 2, True)
        a("s_branch L_next" + tag)

    path(1, "B")
    path(2, "A")

    a.label("L_flush")
    a.nop(3)
    a("v_and_b32 v%d, 63, v0" % VT)
    a("v_and_b32 v%d, 15, v%d" % (VT + 1, VT))
    a("v_lshrrev_b32 v%d, 4, v%d" % (VT, VT))
    a("v_lshlrev_b32 v%d, 5, v%d" % (VT + 1, VT + 1))
    a("v_lshl_add_u32 v%d, v%d, 3, v%d" % (VT + 1, VT, VT + 1))
    a("s_mul_i32 s33, s30, %d" % ENT_P)
    a("s_add_u32 s33, s33, s93")
    a("v_add_u32 v%d, s33, v%d" % (VT + 1, VT + 1))
    a("v_mov_b32 v%d, s33" % VT)
    for h in range(2):
        if h == 1:
            a("s_bitcmp1_b32 s92, s30")
            a("s_cbranch_scc0 L_flushed")
        t1, t2 = TMP, TMP + 1
        a("v_mov_b32 v%d, v%d" % (t1, NM + h))
        a("v_mov_b32 v%d, v%d" % (t2, NM + h))
        a("v_permlane32_swap_b32 v%d, v%d" % (t1, t2))
        a("v_max_f32 v%d, v%d, v%d" % (t1, t1, t2))
        a("v_mov_b32 v%d, v%d" % (t2, t1))
        a("v_permlane16_swap_b32 v%d, v%d" % (t1, t2))
        a("v_max_f32 v%d, v%d, v%d" % (t1, t1, t2))
        a("v_sub_f32 v%d, v%d, v%d" % (AL, NM + h, t1))
        a("v_exp_f32 v%d, v%d" % (AL, AL))
        for j in range(4):
            r = ACC + 8 * h + 2 * j
            a("v_pk_mul_f32 v[%d:%d], v[%d:%d], v[%d:%d] op_sel:[0,0] op_sel_hi:[1,0]" % (r, r + 1, r, r + 1, AL, AL + 1))
        a("v_mul_f32 v%d, v%d, v%d" % (t2, L + h, AL))
        a("v_mov_b32 v%d, v%d" % (TMP + 2, t2))
        a("v_permlane32_swap_b32 v%d, v%d" % (t2, TMP + 2))
        a("v_add_f32 v%d, v%d, v%d" % (t2, t2, TMP + 2))
        a("v_mov_b32 v%d, v%d" % (TMP + 2, t2))
        a("v_permlane16_swap_b32 v%d, v%d" % (t2, TMP + 2))
        a("v_add_f32 v%d, v%d, v%d" % (t2, t2, TMP + 2))
        o = [ACC + 8 * h + k for k in range(8)]
        for k in range(4):
            a("v_permlane32_swap_b32 v%d, v%d" % (o[k], o[k + 4]))
        for k in range(4):
            a("v_add_f32 v%d, v%d, v%d" % (o[k], o[k], o[k + 4]))
        for k in range(2):
            a("v_permlane16_swap_b32 v%d, v%d" % (o[k], o[k + 2]))
        for k in range(2):
            a("v_add_f32 v%d, v%d, v%d" % (o[k], o[k], o[k + 2]))
        a("ds_write_b64 v%d, v[%d:%d] offset:%d" % (VT + 1, o[0], o[1], h * 528))
        a("ds_write_b64 v%d, v[%d:%d] offset:%d" % (VT, t1, t2, h * 528 + 512))
    a.label("L_flushed")
    a("s_lshl_b32 s33, s30, 2")
    a("v_mov_b32 v%d, s33" % VT)
    a("v_mov_b32 v%d, 1" % (VT + 1))
    a("s_waitcnt lgkmcnt(0)")
    a("s_mov_b64 exec, 1")
    a("ds_add_rtn_u32 v%d, v%d, v%d offset:%d" % (VT, VT, VT + 1, L_CNT + 8))
    a("s_mov_b64 exec, -1")
    if ts:
        a("s_cmp_lg_u32 s30, 2")
        a("s_cbranch_scc1 L_nost4")
        stamp(4)
        a.label("L_nost4")
    for k in range(16):
        a("v_mov_b32 v%d, 0" % (ACC + k))
    for h in range(2):
        a("v_mov_b32 v%d, %s" % (NM + h, NEG))
        a("v_mov_b32 v%d, 0" % (L + h))
    a("s_waitcnt lgkmcnt(0)")
    a("v_readfirstlane_b32 s33, v%d" % VT)
    a("s_cmp_lg_u32 s33, 11")
    a("s_cbranch_scc1 L_nojob")
    J = R0 + 16
    JA = J
    a("v_and_b32 v%d, 63, v0" % (JA + 2))
    a("v_min_u32 v%d, 11, v%d" % (JA + 3, JA + 2))
    a("s_mul_i32 s33, s30, %d" % ENT_P)
    a("s_add_u32 s33, s33, %d" % L_ENT)
    a("v_mul_u32_u24 v%d, 1056, v%d" % (JA, JA + 3))
    a("v_add_u32 v%d, s33, v%d" % (JA, JA))
    a("v_lshl_add_u32 v%d, v%d, 3, s33" % (JA + 1, JA + 2))
    a("s_add_u32 s34, s97, s30")
    a("s_lshl_b32 s34, s34, 3")
    a("s_add_u32 s34, s34, s91")
    a("s_lshl_b32 s34, s34, 11")
    a("s_add_u32 s34, s34, %d" % WS_PART)
    a("s_bitcmp1_b32 s92, s30")
    a("s_cbranch_scc1 L_jobA")

    def job(NH):
        ML = [J + 4 + 30 * h for h in range(NH)]
        OUT = [J + 8 + 30 * h - (30 * h) % 4 + (4 if h else 0) for h in range(NH)]
        OUT = [J + 8, J + 40][:NH]
        ML = [J + 4, J + 36][:NH]
        MX = [J + 6, J + 38][:NH]
        EO = [J + 12, J + 44][:NH]
        def ereg(h, e):
            if h == 0:
                return J + 12 + 2 * e
            return (J + 44 + 2 * e) if e < 10 else (TMP + 2 * (e - 10))
        for h in range(NH):
            a("ds_read_b64 v[%d:%d], v%d offset:%d" % (ML[h], ML[h] + 1, JA, h * 528 + 512))
        for h in range(NH):
            for e in range(12):
                a("ds_read_b64 v[%d:%d], v%d offset:%d" % (ereg(h, e), ereg(h, e) + 1, JA + 1, h * 528 + e * 1056))
        a("v_cmp_eq_u32 vcc, v%d, v%d" % (JA + 3, JA + 2))
        a("v_and_b32 v%d, 1, v%d" % (JA + 2, JA + 2))
        a("v_cmp_eq_u32 s[84:85], 0, v%d" % (JA + 2))
        a("s_waitcnt lgkmcnt(%d)" % min(15, 12 * NH))
        if NH == 2:
            a("s_waitcnt lgkmcnt(15)")
        for h in range(NH):
            a("v_mov_b32 v%d, v%d" % (MX[h], ML[h]))
            a("v_mov_b32 v%d, 0" % OUT[h])
            a("v_mov_b32 v%d, 0" % (OUT[h] + 1))
            a("v_mov_b32 v%d, s69" % (OUT[h] + 2))
        for sh in (8, 4, 2, 1):
            for h in range(NH):
                a("v_max_f32_dpp v%d, v%d, v%d row_ror:%d %s" % (MX[h], MX[h], MX[h], sh, DPP))
        for h in range(NH):
            a("v_sub_f32 v%d, v%d, v%d" % (ML[h], ML[h], MX[h]))
        for h in range(NH):
            a("v_exp_f32 v%d, v%d" % (ML[h], ML[h]))
        for h in range(NH):
            a("v_cndmask_b32 v%d, 0, v%d, vcc" % (ML[h], ML[h]))
        for h in range(NH):
            a("v_mul_f32 v%d, v%d, v%d" % (MX[h] + 1, ML[h], ML[h] + 1))
        for sh in (8, 4, 2, 1):
            for h in range(NH):
                a("v_add_f32_dpp v%d, v%d, v%d row_ror:%d %s" % (MX[h] + 1, MX[h] + 1, MX[h] + 1, sh, DPP))
        a("s_waitcnt lgkmcnt(0)")
        for h in range(NH):
            for u in range(3):
                for e in range(4 * u, 4 * u + 4):
                    a("v_readlane_b32 s%d, v%d, %d" % (80 + e % 4, ML[h], e))
                for e in range(4 * u, 4 * u + 4):
                    a("v_fma_f32 v%d, v%d, s%d, v%d" % (OUT[h], ereg(h, e), 80 + e % 4, OUT[h]))
                    a("v_fma_f32 v%d, v%d, s%d, v%d" % (OUT[h] + 1, ereg(h, e) + 1, 80 + e % 4, OUT[h] + 1))
            a("v_readfirstlane_b32 s80, v%d" % MX[h])
            a("v_readfirstlane_b32 s81, v%d" % (MX[h] + 1))
            a("v_mov_b32 v%d, s81" % (OUT[h] + 3))
            a("v_mov_b32 v%d, s80" % MX[h])
            a("v_cndmask_b32 v%d, v%d, v%d, s[84:85]" % (OUT[h] + 3, OUT[h] + 3, MX[h]))
            a("buffer_store_dwordx4 v[%d:%d], v1, s[24:27], s34 offen offset:%d sc1" % (OUT[h], OUT[h] + 3, h * 1024))

    job(1)
    a("s_branch L_jobdone")
    a.label("L_jobA")
    job(2)
    a.label("L_jobdone")
    if ts:
        a("s_cmp_lg_u32 s30, 2")
        a("s_cbranch_scc1 L_nojob")
        stamp(5)
    a.label("L_nojob")
    a("s_cmp_eq_u32 s30, 2")
    a("s_cbranch_scc1 L_end")
    a("s_add_u32 s30, s30, 1")
    a("s_cmp_lg_u32 s30, s89")
    a("s_cbranch_scc1 L_flush")
    a("s_mov_b32 s87, 0")
    a("s_lshl_b32 s33, s30, 2")
    a("v_mov_b32 v%d, s33" % VT)
    a.label("L_qwait")
    a("ds_read_b32 v%d, v%d offset:%d" % (VT + 1, VT, L_CNT + 16))
    a("s_add_u32 s87, s87, 1")
    a("s_waitcnt lgkmcnt(0)")
    a("v_readfirstlane_b32 s33, v%d" % (VT + 1))
    a("s_cmp_eq_u32 s33, 128")
    a("s_cbranch_scc1 L_qok")
    a("s_sleep 1")
    a("s_cmp_lt_u32 s87, %d" % (SPIN_MAX * 10))
    a("s_cbranch_scc1 L_qwait")
    a.label("L_qok")
    a("s_lshl_b32 s33, s30, 9")
    a("v_add_u32 v%d, s33, v2" % VT)
    a("ds_read_b128 v[%d:%d], v%d offset:%d" % (Q, Q + 3, VT, L_Q))
    a("ds_read_b128 v[%d:%d], v%d offset:%d" % (Q + 4, Q + 7, VT, L_Q + 256))
    a("s_waitcnt lgkmcnt(0)")
    a("s_bitcmp1_b32 s92, s30")
    a("s_cbranch_scc1 L_stepA")
    a("s_branch L_stepB")

    a.label("L_helper")
    if prio:
        a("s_setprio 3")
    a("s_cmp_ge_u32 s2, 128")
    a("s_cselect_b32 s14, s46, s36")
    a("s_cselect_b32 s15, s47, s37")
    a("s_cselect_b32 s4, s4, s42")
    a("s_cselect_b32 s5, s5, s43")
    srd(a, 20, 4, 5, W_BYTES)
    srd(a, 16, 14, 15, 2304)
    a("s_and_b32 s33, s2, 1")
    a("s_mul_i32 s33, s33, 288")
    a("v_mul_u32_u24 v4, 72, v2")
    a("v_lshrrev_b32 v5, 3, v3")
    a("v_add3_u32 v4, v4, v5, s33")
    a("v_lshlrev_b32 v5, 1, v4")
    a("v_lshlrev_b32 v4, 13, v4")
    a("v_and_b32 v6, 7, v3")
    a("v_lshl_add_u32 v4, v6, 4, v4")
    a("s_and_b32 s3, s2, 126")
    a("s_lshl_b32 s3, s3, 6")
    a("v_add_u32 v4, s3, v4")
    W0 = 8
    X0 = 44
    QA = 62
    QT = 78
    for i in range(9):
        a("s_mov_b32 s32, %d" % (i * 65536))
        a("buffer_load_dwordx4 v[%d:%d], v4, s[20:23], s32 offen nt" % (W0 + 4 * i, W0 + 4 * i + 3))
    for i in range(9):
        for b in range(2):
            a("buffer_load_ushort v%d, v5, s[16:19], 0 offen offset:%d" % (X0 + 2 * i + b, i * 16 + b * 1152))
    stamp(0)
    a("v_lshlrev_b32 v6, 2, v0")
    a("v_lshl_add_u32 v7, v0, 3, s91")
    a("v_cmp_gt_u32 vcc, 32, v0")
    a("v_cndmask_b32 v7, -1, v7, vcc")
    a("ds_write_b32 v6, v7 offset:%d" % L_RING)
    a("v_mov_b32 v7, %d" % (12 * NBP))
    a("v_cmp_eq_u32 vcc, 1, v3")
    a("v_cndmask_b32 v7, 0, v7, vcc")
    a("v_and_b32 v6, 7, v3")
    a("v_lshlrev_b32 v6, 2, v6")
    a("v_cmp_gt_u32 vcc, 8, v3")
    a("s_and_saveexec_b64 s[34:35], vcc")
    a("ds_write_b32 v6, v7 offset:%d" % L_CNT)
    a("s_mov_b64 exec, s[34:35]")
    a("v_mov_b32 v7, 1")
    a("s_waitcnt lgkmcnt(0)")
    a("s_barrier")
    srd(a, 52, 10, 11, 256)
    a("s_cmp_eq_u32 s65, 0")
    a("s_cselect_b32 s14, s44, s6")
    a("s_cselect_b32 s15, s45, s7")
    srd(a, 56, 14, 15, W_BYTES)
    a("s_add_u32 s69, s69, 1")
    a("s_lshl_b32 s67, s96, 8")
    a("s_add_u32 s67, s67, %d" % WS_CTR)
    a("s_lshl_b32 s68, s69, 8")
    for k in range(16):
        a("v_mov_b32 v%d, 0" % (QA + k))
    a("s_waitcnt vmcnt(0)")
    stamp(1)
    for k in range(18):
        a("v_lshlrev_b32 v%d, 16, v%d" % (X0 + k, X0 + k))
    for i in range(9):
        for j in range(4):
            a("v_lshlrev_b32 v%d, 16, v%d" % (QT + 2 * j, W0 + 4 * i + j))
            a("v_and_b32 v%d, 0xffff0000, v%d" % (QT + 2 * j + 1, W0 + 4 * i + j))
        for b in range(2):
            xr = X0 + 2 * i
            sel = "op_sel:[0,0,0] op_sel_hi:[1,0,1]" if b == 0 else "op_sel:[0,1,0] op_sel_hi:[1,1,1]"
            for j in range(4):
                r = QA + 8 * b + 2 * j
                a("v_pk_fma_f32 v[%d:%d], v[%d:%d], v[%d:%d], v[%d:%d] %s" % (r, r + 1, QT + 2 * j, QT + 2 * j + 1, xr, xr + 1, r, r + 1, sel))
    y = [QA + k for k in range(16)]
    reduce16_rows(a, y)
    for k in range(4):
        a("v_add_f32_dpp v%d, v%d, v%d row_ror:8 %s" % (y[k], y[k], y[k], DPP))
    a("v_lshrrev_b32 v4, 4, v3")
    a("v_lshrrev_b32 v5, 1, v4")
    a("v_and_b32 v4, 1, v4")
    a("v_lshlrev_b32 v6, 9, v2")
    a("v_lshl_add_u32 v6, v5, 8, v6")
    a("v_lshl_add_u32 v6, v4, 4, v6")
    a("v_and_b32 v4, 7, v3")
    a("v_lshl_add_u32 v6, v4, 5, v6")
    a("ds_write_b64 v6, v[%d:%d] offset:%d" % (y[0], y[1], L_QP))
    a("ds_write_b64 v6, v[%d:%d] offset:%d" % (y[2], y[3], L_QP + 8))
    a("v_mov_b32 v6, 0")
    a("s_waitcnt lgkmcnt(0)")
    a("ds_add_u32 v6, v7 offset:%d" % L_CNT)
    a("s_cmp_lt_u32 s28, 2")
    a("s_cbranch_scc1 L_h01")
    a("s_cmp_eq_u32 s28, 2")
    a("s_cbranch_scc1 L_h2")
    a.label("L_spin1")
    a("ds_read_b32 v8, v6 offset:%d" % L_CNT)
    a("s_waitcnt lgkmcnt(0)")
    a("v_readfirstlane_b32 s33, v8")
    a("s_cmp_lg_u32 s33, 256")
    a("s_cbranch_scc1 L_spin1")
    a("v_lshlrev_b32 v6, 3, v3")
    for w in range(4):
        a("ds_read_b64 v[%d:%d], v6 offset:%d" % (8 + 2 * w, 9 + 2 * w, L_QP + w * 512))
    a("s_lshl_b32 s32, s2, 10")
    a("v_mov_b32 v18, s69")
    a("v_mov_b32 v19, s69")
    a("s_waitcnt lgkmcnt(0)")
    a("v_pk_add_f32 v[8:9], v[8:9], v[10:11]")
    a("v_pk_add_f32 v[12:13], v[12:13], v[14:15]")
    a("v_pk_add_f32 v[16:17], v[8:9], v[12:13]")
    a("buffer_store_dwordx4 v[16:19], v1, s[24:27], s32 offen offset:%d sc1" % WS_QG)
    stamp(2)
    a("s_barrier")
    a("v_mov_b32 v6, 0")
    a("s_mov_b64 exec, 1")
    a("buffer_atomic_add v7, v6, s[52:55], 0 offen sc0 sc1")
    a("s_waitcnt vmcnt(0)")
    a("v_readfirstlane_b32 s33, v7")
    a("s_cmp_lg_u32 s33, 255")
    a("s_cbranch_scc1 L_nobump")
    a("s_mov_b32 s33, %d" % WS_EPOCH)
    a("buffer_store_dword v18, v6, s[24:27], s33 offen sc1")
    a.label("L_nobump")
    a("s_mov_b64 exec, -1")
    a("s_branch L_wo")
    a.label("L_h2")
    a("s_cmp_lg_u32 s91, 0")
    a("s_cbranch_scc1 L_h2b")
    a("v_mov_b32 v8, s68")
    a("s_mov_b64 exec, 1")
    a("buffer_store_dword v8, v6, s[24:27], s67 offen sc1")
    a("s_mov_b64 exec, -1")
    a.label("L_h2b")
    a("s_waitcnt lgkmcnt(0)")
    a("s_barrier")
    a("s_branch L_wo")
    a.label("L_h01")
    a("v_and_b32 v8, 31, v3")
    a("v_lshlrev_b32 v8, 4, v8")
    a("v_lshrrev_b32 v9, 5, v3")
    a("v_lshl_add_u32 v8, v9, 11, v8")
    for step in range(2):
        lpoll = "L_pollq%d" % step
        ldone = "L_pollqd%d" % step
        if step == 0:
            a("s_add_u32 s33, s96, 32")
            a("s_lshl_b32 s33, s33, 12")
            a("s_lshl_b32 s34, s28, 9")
            a("v_lshlrev_b32 v10, 2, v3")
            a("v_lshl_add_u32 v10, v2, 10, v10")
        else:
            a("s_and_b32 s33, s96, 15")
            a("s_lshl_b32 s33, s33, 1")
            a("s_add_u32 s33, s33, s28")
            a("s_lshl_b32 s33, s33, 12")
            a("s_lshr_b32 s34, s96, 4")
            a("s_lshl_b32 s34, s34, 9")
            a("v_lshlrev_b32 v10, 2, v3")
            a("v_lshl_add_u32 v10, v2, 8, v10")
        a("s_add_u32 s75, s33, s34")
        a("s_mov_b32 s33, 0")
        a.label(lpoll)
        a("buffer_load_dwordx4 v[12:15], v8, s[24:27], s75 offen offset:%d sc1" % WS_QG)
        a("buffer_load_dwordx4 v[16:19], v8, s[24:27], s75 offen offset:%d sc1" % (WS_QG + 1024))
        a("s_add_u32 s33, s33, 1")
        a("s_waitcnt vmcnt(0)")
        a("v_cmp_eq_u32 vcc, s69, v14")
        a("v_cmp_eq_u32 s[76:77], s69, v18")
        a("s_and_b64 s[76:77], vcc, s[76:77]")
        a("s_cmp_eq_u64 s[76:77], -1")
        a("s_cbranch_scc1 %s" % ldone)
        a("s_sleep %d" % sleep)
        a("s_cmp_lt_u32 s33, %d" % SPIN_MAX)
        a("s_cbranch_scc1 %s" % lpoll)
        a.label(ldone)
        a("v_pk_add_f32 v[12:13], v[12:13], v[16:17]")
        a("v_cvt_pk_bf16_f32 v12, v12, v13")
        a("ds_write_b32 v10, v12 offset:%d" % (L_Q + step * 512))
        if step == 0:
            stamp(3)
        a("s_waitcnt lgkmcnt(0)")
        if step == 0:
            a("s_barrier")
        else:
            a("ds_add_u32 v6, v7 offset:%d" % (L_CNT + 20))
            a("ds_add_u32 v6, v7 offset:%d" % (L_CNT + 24))

    a.label("L_wo")
    W = 8
    PO = 72
    Y = 104
    OP = 112
    TT = 120
    a("s_cmp_eq_u32 s64, 0")
    a("s_cbranch_scc1 L_nowo")
    a("s_lshl_b32 s45, s78, 2")
    a("s_add_u32 s45, s45, s28")
    a("s_lshl_b32 s35, s45, 7")
    a("v_lshrrev_b32 v4, 3, v3")
    a("v_lshl_add_u32 v4, v4, 4, s35")
    a("v_mul_u32_u24 v4, 1152, v4")
    a("v_and_b32 v5, 7, v3")
    a("v_lshl_add_u32 v4, v5, 4, v4")
    a("v_add_u32 v4, s66, v4")
    for i in range(16):
        a("s_mov_b32 s33, %d" % (i * 1152))
        if XW:
            a("s_waitcnt vmcnt(%d)" % (XW - 1))
        a("buffer_load_dwordx4 v[%d:%d], v4, s[56:59], s33 offen nt" % (W + 4 * i, W + 4 * i + 3))
    a("s_mov_b32 s34, 0x05040100")
    a("s_mov_b32 s35, 0x07060302")
    a("s_waitcnt vmcnt(0)")
    for u in range(8):
        for d in range(4):
            r0 = W + 8 * u + d
            r1 = W + 8 * u + 4 + d
            a("v_perm_b32 v%d, v%d, v%d, s34" % (TT + d, r1, r0))
            a("v_perm_b32 v%d, v%d, v%d, s35" % (r1, r1, r0))
        for d in range(4):
            a("v_mov_b32 v%d, v%d" % (W + 8 * u + d, TT + d))
    a.label("L_nowo")
    a("s_cmp_lg_u32 s28, 3")
    a("s_cbranch_scc1 L_nosched")
    a("s_mov_b32 s36, 32")
    a("s_mov_b32 s37, 2")
    a("v_mov_b32 v6, 0")
    a("s_mov_b32 s87, 0")
    a.label("L_ctrwait")
    a("buffer_load_dword v120, v6, s[24:27], s67 offen sc1")
    a("s_add_u32 s87, s87, 1")
    a("s_waitcnt vmcnt(0)")
    a("v_readfirstlane_b32 s33, v120")
    a("s_sub_u32 s33, s33, s68")
    a("s_cmp_lt_u32 s33, 256")
    a("s_cbranch_scc1 L_sched")
    a("s_sleep 8")
    a("s_cmp_lt_u32 s87, %d" % SPIN_MAX)
    a("s_cbranch_scc1 L_ctrwait")
    a.label("L_sched")
    a("ds_read_b32 v120, v6 offset:%d" % (L_CNT + 4))
    a("s_lshl_b32 s34, s36, 3")
    a("s_waitcnt lgkmcnt(0)")
    a("v_readfirstlane_b32 s33, v120")
    a("s_add_u32 s33, s33, %d" % LOOK)
    a("s_cmp_ge_u32 s33, s34")
    a("s_cbranch_scc1 L_grab")
    a("s_sleep 2")
    a("s_add_u32 s87, s87, 1")
    a("s_cmp_lt_u32 s87, %d" % (SPIN_MAX * 20))
    a("s_cbranch_scc1 L_sched")
    a.label("L_grab")
    a("v_mov_b32 v120, s37")
    a("s_mov_b64 exec, 1")
    a("buffer_atomic_add v120, v6, s[24:27], s67 offen sc0 sc1")
    a("s_mov_b64 exec, -1")
    a("s_waitcnt vmcnt(0)")
    a("v_readfirstlane_b32 s33, v120")
    a("s_sub_u32 s33, s33, s68")
    a("s_min_u32 s33, s33, 200")
    a("s_add_u32 s33, s33, 256")
    a("s_add_u32 s34, s33, s37")
    a("s_cmp_gt_u32 s34, 384")
    a("s_cselect_b32 s35, 8, s37")
    a("v_add_u32 v120, s33, v3")
    a("v_add_u32 v121, s36, v3")
    a("v_lshlrev_b32 v121, 2, v121")
    a("v_cmp_gt_u32 vcc, s35, v3")
    a("s_and_saveexec_b64 s[38:39], vcc")
    a("ds_write_b32 v121, v120 offset:%d" % L_RING)
    a("s_mov_b64 exec, s[38:39]")
    a("s_add_u32 s36, s36, s37")
    a("s_cmp_lt_u32 s33, %d" % PAIRTH)
    a("s_cselect_b32 s37, 2, 1")
    a("s_cmp_lg_u32 s35, 8")
    a("s_cbranch_scc1 L_sched")
    a.label("L_nosched")
    a("s_cmp_eq_u32 s64, 0")
    a("s_cbranch_scc1 L_end")
    for b in range(2):
        a("s_lshr_b32 s33, s45, 1")
        a("s_add_u32 s33, s33, %d" % (16 * b))
        a("s_and_b32 s35, s45, 1")
        a("s_lshl_b32 s35, s35, 10")
        a("s_cmp_eq_u32 s65, 0")
        a("s_cselect_b32 s33, s33, s45")
        a("s_cselect_b32 s34, s35, 0")
        a("s_cselect_b32 s%d, 1, %d" % (82 + b, 2 * b))
        a("s_mul_i32 s33, s33, 3")
        a("s_add_u32 s33, s33, s%d" % (82 + b))
        a("s_lshl_b32 s35, s33, 14")
        a("s_add_u32 s35, s35, s34")
        a("s_add_u32 s%d, s35, %d" % (80 + b, WS_PART))
    a("s_mov_b32 s44, 0")
    a("s_mov_b32 s46, 0")
    a("v_mov_b32 v6, 0")
    a("v_lshlrev_b32 v4, 2, v3")
    a("v_lshl_add_u32 v4, v2, 8, v4")
    a("v_lshrrev_b32 v5, 3, v3")
    a("v_lshlrev_b32 v5, 5, v5")
    a("v_lshl_add_u32 v5, v2, 8, v5")
    a("v_and_b32 v7, 7, v3")
    a("v_lshlrev_b32 v7, 5, v7")
    a("v_lshrrev_b32 v%d, 4, v3" % TT)
    a("v_lshl_add_u32 v7, v%d, 3, v7" % TT)
    a("v_lshl_add_u32 v7, v2, 9, v7")
    a.label("L_combo")
    a("s_cmp_eq_u32 s44, 0")
    a("s_cselect_b32 s40, s80, s81")
    a("s_cselect_b32 s41, s82, s83")
    a("s_add_u32 s42, s40, 8192")
    a("s_lshl_b32 s47, s41, 7")
    a("s_add_u32 s47, s47, %d" % GATE)
    a("s_cmp_eq_u32 s41, 2")
    a("s_cselect_b32 s47, -1, s47")
    a("s_mov_b32 s87, 0")
    a.label("L_cwait")
    a("ds_read_b32 v%d, v6 offset:%d" % (TT, L_CNT + 4))
    a("ds_read_b32 v%d, v6 offset:%d" % (TT + 1, L_CNT + 16))
    a("s_add_u32 s87, s87, 1")
    a("s_waitcnt lgkmcnt(0)")
    a("v_readfirstlane_b32 s33, v%d" % (TT + 1))
    a("v_readfirstlane_b32 s34, v%d" % TT)
    a("s_cmp_lg_u32 s33, 0")
    a("s_cbranch_scc1 L_cgo")
    a("s_cmp_ge_u32 s34, s47")
    a("s_cbranch_scc1 L_cgo")
    a("s_sleep 4")
    a("s_cmp_lt_u32 s87, %d" % (SPIN_MAX * 10))
    a("s_cbranch_scc1 L_cwait")
    a.label("L_cgo")
    a("s_mov_b32 s43, 0")
    a("s_mov_b32 s87, 0")
    a.label("L_round")
    for sl in range(8):
        a("s_bitcmp1_b32 s43, %d" % sl)
        a("s_cbranch_scc1 L_skl%d" % sl)
        r = PO + 4 * sl
        a("s_add_u32 s33, s40, %d" % (sl * 2048))
        a("buffer_load_dwordx4 v[%d:%d], v1, s[24:27], s33 offen sc1" % (r, r + 3))
        a.label("L_skl%d" % sl)
    a("s_add_u32 s87, s87, 1")
    a("s_waitcnt vmcnt(0)")
    for sl in range(8):
        a("v_cmp_eq_u32 s[%d:%d], s69, v%d" % (48 + 2 * (sl % 2), 49 + 2 * (sl % 2), PO + 4 * sl + 2))
        a("s_cmp_eq_u64 s[%d:%d], -1" % (48 + 2 * (sl % 2), 49 + 2 * (sl % 2)))
        a("s_cselect_b32 s33, %d, 0" % (1 << sl))
        a("s_or_b32 s43, s43, s33")
    a("s_cmp_eq_u32 s43, 255")
    a("s_cbranch_scc1 L_rdone")
    a("s_cmp_eq_u32 s41, 2")
    a("s_cbranch_scc1 L_rfast")
    a("s_sleep 64")
    a.label("L_rfast")
    a("s_sleep %d" % sleep2)
    a("s_cmp_lt_u32 s87, %d" % SPIN_MAX)
    a("s_cbranch_scc1 L_round")
    a.label("L_rdone")
    x = [PO + 4 * sl + 3 for sl in range(8)]
    wv = [PO + 4 * sl + 2 for sl in range(8)]
    a("v_max3_f32 v%d, v%d, v%d, v%d" % (TT, x[0], x[1], x[2]))
    a("v_max3_f32 v%d, v%d, v%d, v%d" % (TT + 1, x[3], x[4], x[5]))
    a("v_max3_f32 v%d, v%d, v%d, v%d" % (TT, TT, x[6], x[7]))
    a("v_max_f32 v%d, v%d, v%d" % (TT, TT, TT + 1))
    for sl in range(8):
        a("v_sub_f32 v%d, v%d, v%d" % (wv[sl], x[sl], TT))
    for sl in range(8):
        a("v_exp_f32 v%d, v%d" % (wv[sl], wv[sl]))
    a("v_mov_b32 v%d, 0" % TT)
    a("v_mov_b32 v%d, 0" % (TT + 2))
    a("v_mov_b32 v%d, 0" % (TT + 3))
    ev = "quad_perm:[0,0,2,2] " + DPP
    od = "quad_perm:[1,1,3,3] " + DPP
    for sl in range(8):
        a("v_fmac_f32_dpp v%d, v%d, v%d %s" % (TT, wv[sl], x[sl], ev))
        a("v_fmac_f32_dpp v%d, v%d, v%d %s" % (TT + 2, wv[sl], PO + 4 * sl, ev))
        a("v_fmac_f32_dpp v%d, v%d, v%d %s" % (TT + 3, wv[sl], PO + 4 * sl + 1, ev))
    a("v_rcp_f32 v%d, v%d" % (TT, TT))
    a("v_mul_f32_dpp v%d, v%d, v%d %s" % (TT + 2, TT, TT + 2, od))
    a("v_mul_f32_dpp v%d, v%d, v%d %s" % (TT + 3, TT, TT + 3, od))
    a("v_cvt_pk_bf16_f32 v%d, v%d, v%d" % (TT, TT + 2, TT + 3))
    a("ds_write_b32 v4, v%d offset:%d" % (TT, L_O))
    a("s_waitcnt lgkmcnt(0)")
    a("ds_read_b128 v[%d:%d], v5 offset:%d" % (OP, OP + 3, L_O))
    a("ds_read_b128 v[%d:%d], v5 offset:%d" % (OP + 4, OP + 7, L_O + 16))
    a("s_lshl_b32 s33, s44, 8")
    a("v_add_u32 v%d, s33, v7" % TT)
    a("s_waitcnt lgkmcnt(0)")
    for u in range(8):
        for c in range(8):
            wr = W + 8 * u + 4 * (c & 1) + (c >> 1)
            a("v_dot2_f32_bf16 v%d, v%d, v%d, %s" % (Y + c, wr, OP + u, "0" if u == 0 else "v%d" % (Y + c)))
    for k in range(4):
        a("v_permlane32_swap_b32 v%d, v%d" % (Y + k, Y + k + 4))
    for k in range(4):
        a("v_add_f32 v%d, v%d, v%d" % (Y + k, Y + k, Y + k + 4))
    for k in range(2):
        a("v_permlane16_swap_b32 v%d, v%d" % (Y + k, Y + k + 2))
    for k in range(2):
        a("v_add_f32 v%d, v%d, v%d" % (Y + k, Y + k, Y + k + 2))
    for k in range(2):
        a("v_add_f32_dpp v%d, v%d, v%d row_ror:8 %s" % (Y + k, Y + k, Y + k, DPP))
    a("ds_write_b64 v%d, v[%d:%d] offset:%d" % (TT, Y, Y + 1, L_Y))
    a("s_xor_b32 s44, s44, 1")
    a("s_add_u32 s46, s46, 1")
    a("s_cmp_lt_u32 s46, 2")
    a("s_cbranch_scc1 L_combo")
    stamp(6)
    a("v_mov_b32 v%d, 1" % (TT + 1))
    a("s_waitcnt lgkmcnt(0)")
    a("s_mov_b64 exec, 1")
    a("ds_add_rtn_u32 v%d, v6, v%d offset:%d" % (TT, TT + 1, L_CNT + 28))
    a("s_mov_b64 exec, -1")
    a("v_lshlrev_b32 v6, 3, v3")
    a("s_lshl_b32 s32, s78, 10")
    a("s_add_u32 s32, s32, s79")
    a("v_mov_b32 v42, s69")
    a("v_mov_b32 v43, s69")
    srd(a, 60, 8, 9, 4608)
    a("s_waitcnt lgkmcnt(0)")
    a("v_readfirstlane_b32 s33, v%d" % TT)
    a("s_cmp_lg_u32 s33, 3")
    a("s_cbranch_scc1 L_end")
    for w in range(4):
        a("ds_read_b64 v[%d:%d], v6 offset:%d" % (8 + 2 * w, 9 + 2 * w, L_Y + w * 512))
    a("s_waitcnt lgkmcnt(0)")
    a("v_pk_add_f32 v[8:9], v[8:9], v[10:11]")
    a("v_pk_add_f32 v[12:13], v[12:13], v[14:15]")
    a("v_pk_add_f32 v[40:41], v[8:9], v[12:13]")
    a("buffer_store_dwordx4 v[40:43], v1, s[24:27], s32 offen sc1")
    stamp(8)
    a("s_cmp_lg_u32 s78, 0")
    a("s_cbranch_scc1 L_end")
    a("v_lshrrev_b32 v5, 5, v3")
    a("v_mul_u32_u24 v5, 2304, v5")
    a("v_and_b32 v6, 31, v3")
    a("v_lshl_add_u32 v5, v6, 2, v5")
    a("s_mul_i32 s32, s65, 1152")
    a("s_add_u32 s32, s32, s66")
    a("s_add_u32 s34, s79, 4096")
    a("s_mov_b32 s33, 0")
    a.label("L_polly")
    for k in range(1, 8):
        a("buffer_load_dwordx4 v[%d:%d], v1, s[24:27], s%d offen offset:%d sc1" % (8 + 4 * k, 11 + 4 * k, 79 if k < 4 else 34, (k & 3) * 1024))
    a("s_add_u32 s33, s33, 1")
    a("s_waitcnt vmcnt(0)")
    a("v_xor_b32 v8, s69, v14")
    for k in range(2, 8, 2):
        a("v_xor_b32 v9, s69, v%d" % (10 + 4 * k))
        a("v_xor_b32 v10, s69, v%d" % (14 + 4 * k))
        a("v_or3_b32 v8, v8, v9, v10")
    a("v_cmp_ne_u32 vcc, 0, v8")
    a("s_cbranch_vccz L_polly_done")
    a("s_sleep %d" % sleep)
    a("s_cmp_lt_u32 s33, %d" % SPIN_MAX)
    a("s_cbranch_scc1 L_polly")
    a.label("L_polly_done")
    a("v_pk_add_f32 v[12:13], v[12:13], v[16:17]")
    a("v_pk_add_f32 v[20:21], v[20:21], v[24:25]")
    a("v_pk_add_f32 v[28:29], v[28:29], v[32:33]")
    a("v_pk_add_f32 v[36:37], v[36:37], v[40:41]")
    a("v_pk_add_f32 v[12:13], v[12:13], v[20:21]")
    a("v_pk_add_f32 v[28:29], v[28:29], v[36:37]")
    a("v_pk_add_f32 v[12:13], v[12:13], v[28:29]")
    a("v_cvt_pk_bf16_f32 v8, v12, v13")
    a("buffer_store_dword v8, v5, s[60:63], s32 offen")
    stamp(7)
    a.label("L_end")
    a("s_endpgm")
    return a


def build(path, **kw):
    a = gen(**kw)
    txt = HEADER
    txt += "; @launch grid=(256,1,1) block=(1024,1,1) lds=%d\n" % LDS_BYTES
    txt += '.amdgcn_target "amdgcn-amd-amdhsa--gfx950"\n.text\n'
    body, desc = kernel_wrap(NAME + "_kernel", a)
    txt += body
    txt += '.section .rodata,"a"\n.p2align 6\n' + desc
    open(path, "w").write(txt)


if __name__ == "__main__":
    out = sys.argv[1] if len(sys.argv) > 1 else "cdna_kernels/%s.s" % NAME
    kw = {}
    for arg in sys.argv[2:]:
        k, v = arg.split("=")
        kw[k] = int(v)
    build(out, **kw)
```
